```python
import torch

def _softmax(x, axis=-1):
    return torch.softmax(x, dim=axis)
def _gelu(x):
    return torch.nn.functional.gelu(x, approximate="tanh")
def _silu(x):
    return torch.nn.functional.silu(x)
def _sigmoid(x):
    return torch.sigmoid(x)
def _layernorm(x, axis=-1, eps=1e-5):
    m = x.mean(dim=axis, keepdim=True)
    v = x.var(dim=axis, keepdim=True, unbiased=False)
    return (x - m) / torch.sqrt(v + eps)
def _scatter_add(tgt, idx, src, axis=0):
    return tgt.clone().index_add_(axis, idx, src)
def _segment_sum(src, seg, n):
    out = torch.zeros((n,) + src.shape[1:], dtype=src.dtype)
    return out.index_add_(0, seg, src)
def _pad(x, pw):
    flat = tuple(v for pair in reversed(pw) for v in pair)
    return torch.nn.functional.pad(x, flat)

kernel_name = 'gated_mix__linear_attn_block__spectral_gfnet__prompt'

def setup_inputs():

    _w = (lambda a: (lambda t: t.to(torch.bfloat16) if t.is_floating_point() else t)(torch.as_tensor(a)))
    def _A_setup():
        B, S, D = 1, 2048, 640
        return {
            "x": _w((lambda *s: torch.randn(*s, dtype=torch.bfloat16) * 0.05)(B, S, D)),
            "wqkv": _w((lambda *s: torch.randn(*s, dtype=torch.bfloat16) * 0.4)(D, 3 * D)),
            "wo": _w((lambda *s: torch.randn(*s, dtype=torch.bfloat16) * 0.05)(D, D)),
        }
    _A_in = _A_setup()

    def _B_setup():
        B, S, D = 1, 2048, 640
        Df = D // 2 + 1
        return {
            "x": _w((lambda *s: torch.randn(*s, dtype=torch.bfloat16) * 0.05)(B, S, D)),
            "w_r": _w((lambda *s: torch.randn(*s, dtype=torch.bfloat16) * 1.6)(S, Df) * 0.02),
            "w_i": _w((lambda *s: torch.randn(*s, dtype=torch.bfloat16) * 1.6)(S, Df) * 0.02),
        }
    _B_in = _B_setup()

    return {
        "A_x": _A_in["x"],
        "A_wqkv": _A_in["wqkv"],
        "A_wo": _A_in["wo"],
        "B_x": _B_in["x"],
        "B_w_r": _B_in["w_r"],
        "B_w_i": _B_in["w_i"],
        "gate_w": _w((lambda *s: torch.randn(*s, dtype=torch.bfloat16) * 0.05)(640) * 16.0),
    }

def reference(A_x, A_wqkv, A_wo, B_x, B_w_r, B_w_i, gate_w):
    def _A_ref(x, wqkv, wo):
        B, S, D = x.shape
        H = 32; Dh = D // H
        qkv = (lambda x, *d: x.permute(*d))((x @ wqkv).reshape(B, S, 3, H, Dh), 2, 0, 3, 1, 4)
        q, k, v = qkv[0], qkv[1], qkv[2]
        phi = lambda t: torch.where(t > 0, t + 1, torch.exp(t)) + 1e-6
        pq, pk = phi(q), phi(k)
        kv = torch.einsum("bhsd,bhse->bhde", pk, v)
        z = torch.einsum("bhsd->bhd", pk)
        num = torch.einsum("bhqd,bhde->bhqe", pq, kv)
        den = torch.einsum("bhqd,bhd->bhq", pq, z)[..., None] + 1e-6
        o = num / den
        return (lambda x, *d: x.permute(*d))(o, 0, 2, 1, 3).reshape(B, S, D) @ wo

    def _B_ref(x, w_r, w_i):
        B, S, D = x.shape
        X = (lambda x, axes=(-2,-1): torch.fft.rfft2(x.float(), dim=axes))(x, axes=(-2, -1))
        W = w_r + 1j * w_i
        X = X * W
        y = (lambda x, s, axes=(-2,-1): torch.fft.irfft2(x, s=s, dim=axes).to(torch.bfloat16))(X, (S, D), axes=(-2, -1))
        return y

    x = A_x
    g = _sigmoid((x * gate_w).sum(-1, keepdims=True))
    a = _A_ref(x, A_wqkv, A_wo)
    b = _B_ref(x, B_w_r, B_w_i)
    return g * a + (1 - g) * b
```

```python
import re, copy

TRANS = ("v_exp_f32","v_log_f32","v_rcp_f32","v_rsq_f32","v_sqrt_f32","v_sin_f32","v_cos_f32",
         "v_rcp_iflag_f32","v_exp_f16","v_log_f16","v_rcp_f16","v_sin_f16","v_cos_f16")
NO_DST_S = ("s_cmp","s_waitcnt","s_barrier","s_nop","s_branch","s_cbranch","s_endpgm","s_setprio","s_sleep","s_bitcmp","s_setreg","s_sethalt","s_sendmsg")

def regs_of(tok):
    tok = tok.strip()
    neg = False
    tok = tok.lstrip("-")
    m = re.match(r"^abs\((.*)\)$", tok) or re.match(r"^\|(.*)\|$", tok) or re.match(r"^neg\((.*)\)$", tok)
    if m: tok = m.group(1)
    m = re.match(r"^([vsa])(\d+)$", tok)
    if m: return {(m.group(1), int(m.group(2)))}
    m = re.match(r"^([vsa])\[(\d+):(\d+)\]$", tok)
    if m: return {(m.group(1), i) for i in range(int(m.group(2)), int(m.group(3)) + 1)}
    if tok == "vcc": return {("s", 106), ("s", 107)}
    if tok == "vcc_lo": return {("s", 106)}
    if tok == "vcc_hi": return {("s", 107)}
    if tok == "exec": return {("s", 126), ("s", 127)}
    if tok == "exec_lo": return {("s", 126)}
    if tok == "exec_hi": return {("s", 127)}
    if tok == "m0": return {("s", 124)}
    return set()

def split_ops(s):
    out, depth, cur = [], 0, ""
    for ch in s:
        if ch in "[(": depth += 1
        if ch in "])": depth -= 1
        if ch == "," and depth == 0:
            out.append(cur.strip()); cur = ""
        else: cur += ch
    if cur.strip(): out.append(cur.strip())
    return out

class Ins:
    __slots__ = ("text","mn","cls","dst","src","srcC","srcAB","passes","trans","dpp","wide_store","data","sel","lds_dma","sread")
    pass

def parse(text):
    t = text.strip()
    parts = t.split(None, 1)
    mn = parts[0]
    rest = parts[1] if len(parts) > 1 else ""
    ops = split_ops(rest)
    mods = ""
    if ops:
        lp = ops[-1].split(None, 1)
        if len(lp) > 1 and not ops[-1].startswith("abs("):
            ops[-1] = lp[0]; mods = lp[1]
    I = Ins(); I.text = t; I.mn = mn; I.dst = set(); I.src = set(); I.srcC = set(); I.srcAB = set()
    I.passes = 0; I.trans = False; I.dpp = False; I.wide_store = False; I.data = set(); I.sel = False; I.lds_dma = False
    base = re.sub(r"_(e32|e64|dpp|sdwa)$", "", mn)
    R = [regs_of(o) for o in ops]
    if mn.startswith("v_mfma"):
        I.cls = "mfma"; I.dst = R[0]; I.srcAB = R[1] | R[2]; I.srcC = R[3]; I.src = I.srcAB | I.srcC
        I.passes = 8 if "32x32" in mn else 4
    elif mn.startswith("v_"):
        I.cls = "valu"
        I.trans = base in TRANS
        I.dpp = ("dpp" in mn) or ("row_" in mods) or ("quad_perm" in mods) or ("wave_" in mods) or ("row_bcast" in mods)
        I.sel = ("sdwa" in mn) or ("dst_sel" in mods) or (("op_sel" in mods) and not base.startswith("v_pk_") and not base.startswith("v_dot"))
        if base.startswith("v_cmp"):
            I.dst = R[0]; I.src = set().union(*R[1:])
            if base.startswith("v_cmpx"): I.dst |= regs_of("exec")
        elif base in ("v_add_co_u32","v_sub_co_u32","v_subrev_co_u32","v_addc_co_u32","v_subb_co_u32","v_subbrev_co_u32","v_div_scale_f32","v_mad_u64_u32"):
            I.dst = R[0] | R[1]; I.src = set().union(*R[2:])
        elif base.startswith("v_permlane") and "swap" in base:
            I.dst = R[0] | R[1]; I.src = R[0] | R[1]
        elif base == "v_nop":
            pass
        else:
            I.dst = R[0]; I.src = set().union(*R[1:]) if len(R) > 1 else set()
            if base in ("v_fmac_f32","v_pk_fmac_f16","v_dot2c_f32_bf16","v_dot2c_f32_f16","v_fmac_f16","v_writelane_b32") or I.dpp or I.sel:
                I.src |= R[0]
            if base == "v_cndmask_b32" and len(ops) == 3: I.src |= regs_of("vcc")
    elif mn.startswith("ds_"):
        I.cls = "ds"
        if mn.startswith("ds_read") or mn.startswith("ds_bpermute") or mn.startswith("ds_permute") or mn.startswith("ds_swizzle") or "_rtn" in mn:
            I.dst = R[0]; I.src = set().union(*R[1:])
        else:
            I.src = set().union(*R)
    elif mn.startswith("buffer_"):
        I.cls = "vmem"
        islds = re.search(r"\blds\b", mods) is not None
        if mn.startswith("buffer_load") and islds:
            I.lds_dma = True; I.src = set().union(*R) | regs_of("m0")
        elif mn.startswith("buffer_load"):
            I.dst = R[0]; I.src = set().union(*R[1:])
            if "d16" in mn: pass
        elif mn.startswith("buffer_store"):
            I.src = set().union(*R); I.data = R[0]; I.wide_store = ("x3" in mn or "x4" in mn)
        elif mn.startswith("buffer_atomic"):
            I.src = set().union(*R); I.data = R[0]
            if re.search(r"\bsc0\b", mods): I.dst = R[0]
        elif mn.startswith("buffer_inv") or mn.startswith("buffer_wbl2"):
            pass
        else: raise ValueError(t)
    elif mn.startswith("global_"):
        I.cls = "vmem"
        if mn.startswith("global_load_lds"):
            I.lds_dma = True; I.src = set().union(*R) | regs_of("m0")
        elif mn.startswith("global_load"):
            I.dst = R[0]; I.src = set().union(*R[1:])
        elif mn.startswith("global_store"):
            I.src = set().union(*R); I.data = R[1]; I.wide_store = ("x3" in mn or "x4" in mn)
        else: raise ValueError(t)
    elif mn.startswith("s_load") or mn.startswith("s_buffer_load") or mn.startswith("s_memtime") or mn.startswith("s_memrealtime"):
        I.cls = "smem"; I.dst = R[0]; I.src = set().union(*R[1:]) if len(R) > 1 else set()
    elif mn.startswith("s_"):
        I.cls = "salu"
        if any(mn.startswith(p) for p in NO_DST_S):
            I.src = set().union(*R) if R else set()
        else:
            I.dst = R[0] if R else set(); I.src = set().union(*R[1:]) if len(R) > 1 else set()
            if "saveexec" in mn: I.dst |= regs_of("exec"); I.src |= regs_of("exec")
            if mn in ("s_addk_i32","s_mulk_i32"): I.src |= R[0]
    else:
        raise ValueError("unknown instr " + t)
    return I

def isv(r): return r[0] in "va"

class Asm:
    def __init__(self):
        self.out = []
        self.hist = []
        self.vm = []
        self.lg = []
        self.nlab = 0
        self.maxv = 0
        self.maxs = 0
        self.count = 0
    def save(self): return (list(self.hist), list(self.vm), list(self.lg))
    def restore(self, st): self.hist, self.vm, self.lg = list(st[0]), list(st[1]), list(st[2])
    def raw(self, s): self.out.append(s)
    def comment(self, s): self.out.append("    ; " + s)
    def label(self, name=None):
        if name is None:
            self.nlab += 1; name = "L%d" % self.nlab
        return name
    def place(self, name, pad=True):
        self.out.append(name + ":")
    def settle(self, n=None):
        need = 0; el = 0
        for ins, st in reversed(self.hist):
            if ins is not None:
                req = 0
                if ins.cls == "mfma": req = 12 if ins.passes == 8 else 8
                elif ins.cls == "valu": req = 5 if any(r[0] == "s" for r in ins.dst) else 2
                elif ins.wide_store: req = 2
                elif ins.cls == "salu" and ("s", 124) in ins.dst: req = 1
                need = max(need, req - el)
            el += st
        if need > 0: self._nop(need)
        self.hist = []
    def _nop(self, n):
        while n > 0:
            k = min(n, 16)
            self.out.append("    s_nop %d" % (k - 1)); self.hist.append((None, k)); n -= k; self.count += 1
    def _push(self, ins, st=1):
        self.hist.append((ins, st))
        if len(self.hist) > 24: self.hist = self.hist[-24:]
    def _emit_wait(self, vm=None, lg=None):
        s = "    s_waitcnt"
        if vm is not None:
            vm = min(vm, 63); s += " vmcnt(%d)" % vm
            if len(self.vm) > vm: self.vm = self.vm[len(self.vm) - vm:] if vm else []
        if lg is not None:
            lg = min(lg, 15); s += " lgkmcnt(%d)" % lg
            if len(self.lg) > lg: self.lg = self.lg[len(self.lg) - lg:] if lg else []
        self.out.append(s); self._push(None, 1); self.count += 1
    def wait(self, vm=None, lg=None):
        if vm is not None and len(self.vm) <= vm: vm = None
        if lg is not None and len(self.lg) <= lg: lg = None
        if lg is not None and lg > 0 and any(e[2] == "smem" for e in self.lg): lg = 0
        if vm is None and lg is None: return
        self._emit_wait(vm, lg)
    def wait_tag(self, tag):
        vm = lg = None
        for i, e in enumerate(self.vm):
            if e[1] == tag: vm = len(self.vm) - 1 - i
        for i, e in enumerate(self.lg):
            if e[1] == tag: lg = len(self.lg) - 1 - i
        self.wait(vm, lg)
    def I(self, text, tag=None):
        ins = parse(text)
        for r in ins.dst | ins.src:
            if r[0] == "v": self.maxv = max(self.maxv, r[1] + 1)
            if r[0] == "s" and r[1] < 102: self.maxs = max(self.maxs, r[1] + 1)
        touch = ins.dst | ins.src
        vm = lg = None
        for i, (regs, tg, isload) in enumerate(self.vm):
            t = ins.src if (ins.cls == "vmem" and ins.dst and isload) else touch
            if regs & t: vm = len(self.vm) - 1 - i
        for i, (regs, tg, kind) in enumerate(self.lg):
            t = ins.src if (ins.cls == "ds" and kind == "ds") else touch
            if regs & t: lg = 0 if any(e[2] == "smem" for e in self.lg) else len(self.lg) - 1 - i
        if vm is not None or lg is not None: self._emit_wait(vm, lg)
        need = 0; el = 0
        base = re.sub(r"_(e32|e64|dpp|sdwa)$", "", ins.mn)
        for p, st in reversed(self.hist):
            if p is not None:
                req = 0
                vd = {r for r in p.dst if isv(r)}; sd = {r for r in p.dst if r[0] == "s"}
                if p.cls == "valu":
                    if ins.cls == "mfma" and (vd & ins.src): req = max(req, 2)
                    if ins.cls == "valu":
                        if p.trans and not ins.trans and (vd & (ins.src | ins.dst)): req = max(req, 1)
                        if p.trans and ins.trans and (vd & ins.src): req = max(req, 1)
                        if p.sel and (vd & (ins.src | ins.dst)): req = max(req, 1)
                        if sd & ins.src:
                            req = max(req, 4 if base in ("v_readlane_b32", "v_writelane_b32") else 2)
                        if base in ("v_readfirstlane_b32", "v_readlane_b32") and (vd & ins.src): req = max(req, 1)
                        if ins.dpp and (vd & ins.src): req = max(req, 2)
                        if base.startswith("v_permlane") and (vd & ins.src): req = max(req, 2)
                        if base.startswith("v_dot") or p.mn.startswith("v_dot"):
                            if p.mn.startswith("v_dot") and (vd & (ins.src | ins.dst)):
                                ops = split_ops(ins.text.split(None, 1)[1])
                                isC = (p.mn == ins.mn) and not (vd & (regs_of(ops[1]) | regs_of(ops[2])))
                                if not isC: req = max(req, 3)
                    if p.mn.startswith("v_dot") and ins.cls in ("mfma", "vmem", "ds") and (vd & ins.src): req = max(req, 3)
                    if ins.cls == "vmem" and (sd & ins.src): req = max(req, 5)
                    if ins.cls in ("valu","mfma") and (sd & regs_of("exec")): req = max(req, 5)
                    if ins.cls == "salu" and (sd & ins.src): req = max(req, 0)
                if p.cls == "mfma":
                    big = 12 if p.passes == 8 else 8
                    if ins.cls == "mfma":
                        if p.dst & ins.srcAB: req = max(req, big)
                        if p.dst & ins.srcC and not (p.dst == ins.srcC and p.passes == ins.passes): req = max(req, big - 2)
                        if p.dst & ins.dst and not (p.dst == ins.srcC and p.passes == ins.passes): req = max(req, big - 2)
                    elif ins.cls in ("valu", "vmem", "ds"):
                        if p.dst & (ins.src | ins.dst): req = max(req, big)
                        if ins.cls == "valu" and (p.srcC & ins.dst): req = max(req, 7 if p.passes == 8 else 3)
                if p.wide_store and (p.data & ins.dst): req = max(req, 2 if ins.cls in ("valu","mfma") else 1)
                if p.cls == "salu" and ("s", 124) in p.dst and (ins.lds_dma or "addtid" in ins.mn): req = max(req, 1)
                need = max(need, req - el)
            el += st
        if need > 0: self._nop(need)
        self.out.append("    " + ins.text); self.count += 1
        st = 1
        if ins.mn == "s_nop": st = int(ins.text.split()[1], 0) + 1
        self._push(ins, st)
        if ins.cls == "vmem": self.vm.append((set(ins.dst), tag, bool(ins.dst)))
        elif ins.cls == "ds": self.lg.append((set(ins.dst), tag, "ds"))
        elif ins.cls == "smem": self.lg.append((set(ins.dst), tag, "smem"))
        return ins
    def text(self): return "\n".join(self.out) + "\n"

class Alloc:
    def __init__(self, start, end): self.p = start; self.end = end; self.hi = start
    def get(self, n=1, align=None):
        if align is None: align = 2 if n >= 2 else 1
        self.p = (self.p + align - 1) // align * align
        r = self.p; self.p += n
        assert self.p <= self.end, "out of registers"
        self.hi = max(self.hi, self.p)
        return r
    def mark(self): return self.p
    def release(self, m): self.p = m

def vr(b, n=1): return "v%d" % b if n == 1 else "v[%d:%d]" % (b, b + n - 1)
def sr(b, n=1): return "s%d" % b if n == 1 else "s[%d:%d]" % (b, b + n - 1)
```

```python
import ast

def inl(c): return -16 <= c <= 64

def magic(c, rng):
    for s in range(1, 32):
        m = (1 << s) // c + 1
        if m >= (1 << 24): break
        if all(((x * m) >> s) == x // c for x in range(rng)) and (rng - 1) * m < (1 << 32):
            return m, s
    raise ValueError("no magic %d %d" % (c, rng))

class Ex:
    def __init__(self, k, vt, st, env=None, rng=1024):
        self.k = k; self.vt = list(vt); self.st = list(st); self.env = dict(env or {}); self.rng = rng
    def _free(self, x):
        if x[0] == 'v' and x[2]: self.fv.append(x[1])
        if x[0] == 's' and x[2]: self.fs.append(x[1])
    def _nv(self): return ('v', self.fv.pop(), True)
    def _ns(self): return ('s', self.fs.pop(), True)
    def _t(self, x):
        if x[0] == 'c': return str(x[1]) if -16 <= x[1] <= 64 else "0x%x" % (x[1] & 0xffffffff)
        return "%s%d" % (x[0], x[1])
    def ev(self, n, dst=None):
        if isinstance(n, ast.Constant): return ('c', n.value)
        if isinstance(n, ast.Name):
            e = self.env[n.id]
            if isinstance(e, int): return ('c', e)
            return (e[0], int(e[1:]), False)
        if isinstance(n, ast.UnaryOp) and isinstance(n.op, ast.USub):
            a = self.ev(n.operand); assert a[0] == 'c'; return ('c', -a[1])
        if isinstance(n, ast.BinOp):
            op = type(n.op).__name__
            if op == 'Add':
                for L, R in ((n.left, n.right), (n.right, n.left)):
                    sh = None
                    if isinstance(L, ast.BinOp) and isinstance(L.op, (ast.LShift, ast.Mult)):
                        try: c = self.const(L.right)
                        except Exception: c = None
                        if c is not None:
                            if isinstance(L.op, ast.LShift): sh = c
                            elif c > 0 and c & (c - 1) == 0: sh = c.bit_length() - 1
                    if sh is not None:
                        a = self.ev(L.left)
                        if a[0] == 'v':
                            b = self.ev(R)
                            if b[0] == 'v' or b[0] == 's' or (b[0] == 'c' and inl(b[1])):
                                self._free(a); self._free(b)
                                d = dst or self._nv()
                                self.k.I("v_lshl_add_u32 %s, %s, %d, %s" % (self._t(d), self._t(a), sh, self._t(b)))
                                return d
                            t = self.bin('LShift', a, ('c', sh))
                            return self.bin('Add', t, b, dst)
                        t = self.bin('LShift', a, ('c', sh)); b = self.ev(R)
                        return self.bin('Add', t, b, dst)
            a = self.ev(n.left); b = self.ev(n.right)
            return self.bin(op, a, b, dst)
        raise ValueError(ast.dump(n))
    def const(self, n):
        if isinstance(n, ast.Constant): return n.value
        if isinstance(n, ast.Name) and isinstance(self.env[n.id], int): return self.env[n.id]
        raise ValueError
    def keep(self, x): return (x[0], x[1], False)
    def bin(self, op, a, b, dst=None):
        k = self.k
        if a[0] == 'c' and b[0] == 'c':
            f = {'Add': lambda x, y: x + y, 'Sub': lambda x, y: x - y, 'Mult': lambda x, y: x * y, 'LShift': lambda x, y: x << y,
                 'RShift': lambda x, y: x >> y, 'BitAnd': lambda x, y: x & y, 'BitOr': lambda x, y: x | y, 'BitXor': lambda x, y: x ^ y,
                 'FloorDiv': lambda x, y: x // y, 'Mod': lambda x, y: x % y}[op]
            return ('c', f(a[1], b[1]))
        if op in ('Add', 'BitOr', 'BitXor') and b == ('c', 0): return a
        if op in ('Add', 'BitOr', 'BitXor') and a == ('c', 0): return b
        if op in ('Sub', 'LShift', 'RShift') and b == ('c', 0): return a
        if op == 'Mult' and (a == ('c', 0) or b == ('c', 0)): self._free(a); self._free(b); return ('c', 0)
        if op == 'Mult' and b == ('c', 1): return a
        if op == 'Mult' and a == ('c', 1): return b
        if op == 'Mult':
            if a[0] == 'c': a, b = b, a
            if b[0] == 'c' and b[1] > 0 and b[1] & (b[1] - 1) == 0: return self.bin('LShift', a, ('c', b[1].bit_length() - 1), dst)
        if op == 'FloorDiv':
            c = b[1]
            if c & (c - 1) == 0: return self.bin('RShift', a, ('c', c.bit_length() - 1), dst)
            m, s = magic(c, self.rng)
            t = self.bin('Mult', a, ('c', m)); return self.bin('RShift', t, ('c', s), dst)
        if op == 'Mod':
            c = b[1]
            if c & (c - 1) == 0: return self.bin('BitAnd', a, ('c', c - 1), dst)
            q = self.bin('FloorDiv', self.keep(a), b); t = self.bin('Mult', q, b); return self.bin('Sub', a, t, dst)
        isv = a[0] == 'v' or b[0] == 'v' or (dst is not None and dst[0] == 'v' and False)
        if not isv:
            self._free(a); self._free(b)
            d = dst if (dst and dst[0] == 's') else self._ns()
            mn = {'Add': 's_add_u32', 'Sub': 's_sub_u32', 'Mult': 's_mul_i32', 'LShift': 's_lshl_b32', 'RShift': 's_lshr_b32',
                  'BitAnd': 's_and_b32', 'BitOr': 's_or_b32', 'BitXor': 's_xor_b32'}[op]
            k.I("%s %s, %s, %s" % (mn, self._t(d), self._t(a), self._t(b)))
            return d
        assert dst is None or dst[0] == 'v'
        self._free(a); self._free(b)
        d = dst or self._nv()
        if op in ('Add', 'Mult', 'BitAnd', 'BitOr', 'BitXor'):
            if b[0] != 'v': a, b = b, a
            mn = {'Add': 'v_add_u32', 'Mult': 'v_mul_u32_u24', 'BitAnd': 'v_and_b32', 'BitOr': 'v_or_b32', 'BitXor': 'v_xor_b32'}[op]
            k.I("%s %s, %s, %s" % (mn, self._t(d), self._t(a), self._t(b)))
        elif op == 'Sub':
            if b[0] == 'v': k.I("v_sub_u32 %s, %s, %s" % (self._t(d), self._t(a), self._t(b)))
            else: k.I("v_subrev_u32 %s, %s, %s" % (self._t(d), self._t(b), self._t(a)))
        elif op in ('LShift', 'RShift'):
            mn = 'v_lshlrev_b32' if op == 'LShift' else 'v_lshrrev_b32'
            if a[0] == 'v': k.I("%s %s, %s, %s" % (mn, self._t(d), self._t(b), self._t(a)))
            else: k.I("%s_e64 %s, %s, %s" % (mn, self._t(d), self._t(b), self._t(a)))
        return d
    def v(self, dst, s, **kw):
        self.fv = list(self.vt); self.fs = list(self.st)
        old = dict(self.env); self.env.update(kw)
        d = ('v', dst, False)
        n = ast.parse(s, mode='eval').body
        r = self._top(n, d)
        if r != d: self.k.I("v_mov_b32 v%d, %s" % (dst, self._t(r)))
        self.env = old
    def _isv(self, n):
        if isinstance(n, ast.Name):
            e = self.env[n.id]; return (not isinstance(e, int)) and e[0] == 'v'
        if isinstance(n, ast.BinOp): return self._isv(n.left) or self._isv(n.right)
        return False
    def _top(self, n, d):
        if d[0] == 'v' and not self._isv(n): return self.ev(n)
        return self.ev(n, d)
    def s(self, dst, s, **kw):
        self.fv = list(self.vt); self.fs = list(self.st)
        old = dict(self.env); self.env.update(kw)
        d = ('s', dst, False)
        r = self.ev(ast.parse(s, mode='eval').body, d)
        if r != d: self.k.I("s_mov_b32 s%d, %s" % (dst, self._t(r)))
        self.env = old
```

```python
import sys
from dsl import *
from expr import *

NAME = "gated_mix__linear_attn_block__spectral_gfnet__prompt"
WS_PQ  = 0x000000
WS_X1  = 0x280000
WS_WT  = 0x520000
WS_WOF = 0x7C0000
WS_KV  = 0x8A0000
WS_G   = 0x8B0000
WS_Y   = 0x8C0000
WS_END = 0xB40000
WS_TS  = 0x3000000
OOB = 0x40000000
EPS = 0x358637bd
LOG2E = 0x3fb8aa3b

class Opt:
    stamps = False
    locality = True
    fuse = False
    rot = True
    pre = 2
    pbar = 1
OPT = Opt()

def srd(k, dst, lo, hi, nbytes):
    k.I("s_mov_b32 s%d, s%d" % (dst, lo))
    k.I("s_and_b32 s%d, s%d, 0xffff" % (dst + 1, hi))
    k.I("s_mov_b32 s%d, 0x%x" % (dst + 2, nbytes))
    k.I("s_mov_b32 s%d, 0x20000" % (dst + 3))

S_X, S_WQKV, S_WO, S_WR, S_WI, S_GW, S_OUT, S_DBG, S_WS = 8, 10, 12, 16, 18, 20, 22, 24, 26
R_X, R_W, R_WS, R_DBG, R_WR, R_WI, R_WO, R_GW, R_OUT, R_TS = 28, 32, 36, 40, 44, 48, 52, 56, 60, 64
S_WAVE = 3
ST = [74, 75, 76, 77, 78, 79]
def R(b): return "s[%d:%d]" % (b, b + 3)

def prologue(k, nwg):
    k.I("s_load_dwordx8 s[8:15], s[0:1], 0")
    k.I("s_load_dwordx8 s[16:23], s[0:1], 32")
    k.I("s_load_dwordx4 s[24:27], s[0:1], 64")
    k.I("s_cmp_ge_u32 s2, %d" % nwg)
    lab = k.label()
    k.I("s_cbranch_scc0 %s" % lab)
    k.I("s_endpgm")
    k.place(lab)
    k.I("v_lshrrev_b32 v1, 6, v0")
    k.I("v_and_b32 v0, 63, v0")
    k.I("v_readfirstlane_b32 s%d, v1" % S_WAVE)

def stamp_setup(k):
    if not OPT.stamps: return
    k.I("s_add_u32 s64, s%d, 0x%x" % (S_WS, WS_TS))
    k.I("s_addc_u32 s65, s%d, 0" % (S_WS + 1))
    k.I("s_and_b32 s65, s65, 0xffff")
    k.I("s_mov_b32 s66, 0x800000")
    k.I("s_mov_b32 s67, 0x20000")
    k.I("s_lshl_b32 s68, s2, 3")
    k.I("s_add_u32 s68, s68, s%d" % S_WAVE)
    k.I("s_lshl_b32 s68, s68, 7")
    if k.kidx: k.I("s_add_u32 s68, s68, 0x%x" % (k.kidx * 0x60000))

STV = 252
def stamp(k, slot, clk=False):
    if not OPT.stamps: return
    vt = STV
    k.I("s_memtime s[70:71]" if clk else "s_memrealtime s[70:71]")
    k.I("s_waitcnt lgkmcnt(0)"); k.lg = []
    k.I("v_mov_b32 v%d, s70" % vt)
    k.I("v_mov_b32 v%d, s71" % (vt + 1))
    k.I("v_mov_b32 v%d, 0" % (vt + 2))
    k.I("s_mov_b64 s[72:73], exec")
    k.I("s_mov_b64 exec, 1")
    k.I("buffer_store_dwordx2 v[%d:%d], v%d, s[64:67], s68 offen offset:%d" % (vt, vt + 1, vt + 2, slot * 8))
    k.I("s_mov_b64 exec, s[72:73]")

def phi(k, regs, tmp, s_l2e, s_eps):
    n = len(regs)
    for i in range(n): k.I("v_mul_f32 v%d, s%d, v%d" % (tmp + i, s_l2e, regs[i]))
    for i in range(n): k.I("v_exp_f32_e64 v%d, v%d clamp" % (tmp + i, tmp + i))
    for i in range(n): k.I("v_max_f32 v%d, s%d, v%d" % (regs[i], s_eps, regs[i]))
    for i in range(n): k.I("v_add_f32 v%d, v%d, v%d" % (regs[i], regs[i], tmp + i))

class Sync:
    def __init__(self, k, vmine, vbase, vp, vt, stmp, scnt):
        self.k, self.vmine, self.vbase, self.vp, self.vt, self.s, self.sc = k, vmine, vbase, vp, vt, stmp, scnt
    def publish(self, val):
        k = self.k
        k.I("v_mov_b32 v%d, %d" % (self.vt, val))
        k.I("ds_write_b32 v%d, v%d" % (self.vmine, self.vt))
    def issue(self):
        self.k.I("ds_read_b128 v[%d:%d], v%d" % (self.vp, self.vp + 3, self.vbase))
    def check(self, val):
        k = self.k; p = self.vp
        ok = k.label(); retry = k.label()
        def body():
            k.I("v_min3_u32 v%d, v%d, v%d, v%d" % (self.vt, p, p + 1, p + 2))
            k.I("v_min_u32 v%d, v%d, v%d" % (self.vt, self.vt, p + 3))
            k.I("v_readfirstlane_b32 s%d, v%d" % (self.s, self.vt))
            k.I("s_cmp_ge_u32 s%d, %d" % (self.s, val))
        body()
        k.I("s_cbranch_scc1 %s" % ok)
        st = k.save()
        k.I("s_mov_b32 s%d, 0x40000" % self.sc)
        k.place(retry)
        k.I("s_sub_u32 s%d, s%d, 1" % (self.sc, self.sc))
        k.I("s_cbranch_scc1 %s" % ok)
        self.issue()
        k.I("s_waitcnt lgkmcnt(0)"); k.lg = []
        body()
        k.I("s_cbranch_scc0 %s" % retry)
        k.restore(st)
        k.place(ok)
    def barrier(self, val):
        self.publish(val); self.issue(); self.check(val)

def poll_dword(k, vdst, vzero, rsrc, soff, stmp, scnt, first_issued=False):
    ok = k.label(); retry = k.label()
    if not first_issued:
        k.I("buffer_load_dword v%d, v%d, %s, s%d offen sc1" % (vdst, vzero, R(rsrc), soff))
    k.I("v_readfirstlane_b32 s%d, v%d" % (stmp, vdst)); k.I("s_cmp_lg_u32 s%d, 0" % stmp); k.I("s_cbranch_scc1 %s" % ok)
    st = k.save()
    k.I("s_mov_b32 s%d, 0x20000" % scnt)
    k.place(retry)
    k.I("s_sub_u32 s%d, s%d, 1" % (scnt, scnt)); k.I("s_cbranch_scc1 %s" % ok)
    k.I("s_sleep 2")
    k.I("buffer_load_dword v%d, v%d, %s, s%d offen sc1" % (vdst, vzero, R(rsrc), soff))
    k.I("s_waitcnt vmcnt(0)"); k.vm = []
    k.I("v_readfirstlane_b32 s%d, v%d" % (stmp, vdst)); k.I("s_cmp_lg_u32 s%d, 0" % stmp); k.I("s_cbranch_scc0 %s" % retry)
    k.restore(st)
    k.place(ok)

S_RB, S_QD, S_Q, S_U, S_AOFF, S_BOFF, S_LA, S_LB, S_L2E, S_EPS = 4, 5, 6, 80, 81, 82, 83, 84, 85, 86

def k1(k):
    prologue(k, 256)
    E = Ex(k, [], ST, {'id': 's2', 'w': 's%d' % S_WAVE})
    if OPT.locality:
        E.s(S_RB, "((id&3)<<2) + ((id>>3)&3)")
        E.s(S_QD, "(id&4) + ((id>>5)&3)")
    else:
        E.s(S_RB, "(id>>3)&15")
        E.s(S_QD, "(id + (id>>3))&7")
    lq = k.label("K1_Q")
    k.I("s_cmp_ge_u32 s2, 128"); k.I("s_cbranch_scc1 %s" % lq)
    st = k.save()
    k1_kv(k)
    k.restore(st); k.place(lq)
    k1_q(k)

def unit_setup(k):
    k.I("s_lshl_b32 s%d, s%d, 7" % (S_AOFF, S_U))
    k.I("s_mul_i32 s%d, s%d, 245760" % (S_BOFF, S_U))
    k.I("s_add_u32 s%d, s%d, 1" % (S_U, S_U))
    k.I("s_cmp_eq_u32 s%d, 10" % S_U)
    k.I("s_cselect_b32 s%d, 0, s%d" % (S_U, S_U))

def k1_kv(k):
    SLOT = 36864; BK = 16384; BV = 26624; EX = 2 * SLOT; EXP = 10272
    V = Alloc(1, 252)
    ACC = V.get(40, 4)
    FA = [V.get(8, 4), V.get(8, 4)]
    FB = [V.get(20, 4), V.get(20, 4)]
    vDA = V.get(2); vDB = V.get(3)
    vA = V.get(8); vN = V.get(4); vX = V.get(4)
    vt = V.get(6, 2)
    vE1 = V.get(1); vE2 = V.get(1); vP = V.get(4); vO = V.get(1); vZ = V.get(1); vF = V.get(1)
    E = Ex(k, [vt + i for i in range(6)], ST, {'l': 'v0', 'w': 's%d' % S_WAVE, 'rb': 's%d' % S_RB, 'qd': 's%d' % S_QD})
    acc = lambda T, t: ACC + (T * 2 + t) * 4
    for a in range(2):
        E.v(vDA + a, "(rb*128 + 16*w + 8*a + (l>>3))*1280 + (((l&7) ^ (4*a + (l>>4)))<<4)", a=a)
    tmp = V.get(2)
    for b in range(3):
        E.v(tmp, "((l + 64*b)//10) + ((w&3)<<4)", b=b)
        E.v(tmp + 1, "(t & 51) + ((t&4)<<1) + ((t&8)>>1)", t='v%d' % tmp)
        E.v(vDB + b, "kk*3840 + ((l + 64*b)%10)*16 + (1280 + (w>>2)*1280 + qd*160)", b=b, kk='v%d' % (tmp + 1))
    E.s(S_LA, "w*2048"); E.s(S_LB, "(w>>2)*10240 + (w&3)*2560 + BK", BK=BK)
    if OPT.rot: E.s(S_U, "(3*(rb&3) + 2*(qd&3)) % 10")
    else: k.I("s_mov_b32 s%d, 0" % S_U)
    k.wait(lg=0)
    srd(k, R_X, S_X, S_X + 1, 2048 * 1280)
    srd(k, R_W, S_WQKV, S_WQKV + 1, 640 * 3840)
    stamp_setup(k)
    stamp(k, 0)
    def dma(i, part=None):
        sl = (i % 4) * SLOT
        steps = []
        def a_(a):
            k.I("s_add_u32 m0, s%d, %d" % (S_LA, sl + a * 1024))
            k.I("buffer_load_dwordx4 v%d, %s, s%d offen lds" % (vDA + a, R(R_X), S_AOFF), tag="U%d" % i)
        def b_(b):
            k.I("s_add_u32 m0, s%d, %d" % (S_LB, sl + b * 1024))
            if b == 2: k.I("s_mov_b64 exec, 0xffffffff")
            k.I("buffer_load_dwordx4 v%d, %s, s%d offen lds" % (vDB + b, R(R_W), S_BOFF), tag="U%d" % i)
            if b == 2: k.I("s_mov_b64 exec, -1")
        return [lambda: (unit_setup(k), a_(0)), lambda: b_(0), lambda: a_(1), lambda: b_(1), lambda: b_(2)]
    for f in dma(0): f()
    stamp(k, 8)
    srd(k, R_WS, S_WS, S_WS + 1, WS_END)
    srd(k, R_DBG, S_DBG, S_DBG + 1, 256)
    for ks in range(2):
        E.v(vA + ks, "((w&3)*32 + (l&15))*128 + (((4*ks + (l>>4)) ^ ((l&15)>>1))<<4)", ks=ks)
    E.v(tmp, "(((l>>5)<<4) + (((l>>4)&1)<<2) + ((l>>2)&3))*160")
    E.v(vN, "t + ((l&3)<<3) + (w>>2)*80 + BK", t='v%d' % tmp, BK=BK)
    E.v(vX, "t + (l&3)*40 + (w>>2)*10240 + (BK + 32)", t='v%d' % tmp, BK=BK)
    for s in range(1, 4):
        for ks in range(2): k.I("v_add_u32 v%d, %d, v%d" % (vA + 2 * s + ks, s * SLOT, vA + ks))
        k.I("v_add_u32 v%d, %d, v%d" % (vN + s, s * SLOT, vN)); k.I("v_add_u32 v%d, %d, v%d" % (vX + s, s * SLOT, vX))
    k.I("s_mov_b32 s%d, 0x%x" % (S_L2E, LOG2E)); k.I("s_mov_b32 s%d, 0x%x" % (S_EPS, EPS))
    k.I("s_cmp_lt_u32 s%d, 4" % S_WAVE); k.I("s_cselect_b32 s74, s%d, 0" % S_EPS)
    for T in range(5):
        src = "s%d" % S_EPS if T < 2 else ("s74" if T == 2 else "0")
        for i in range(8): k.I("v_mov_b32 v%d, %s" % (acc(T, 0) + i, src))
    E.v(vE1, "(w&3)*EXP + (w>>2)*2048 + l*16 + EX", EXP=EXP, EX=EX)
    E.v(vE2, "(w&3)*EXP + (w>>2)*5120 + l*16 + (EX + 4096)", EXP=EXP, EX=EX)
    lo = V.get(4)
    E.v(lo, "l*16 + EX", EX=EX)
    E.v(lo + 1, "(((l>>4)<<4) + ((l>>2)&3))*16 + EX", EX=EX)
    def bh(dst, sh, par):
        k.I("v_add_u32 v%d, s%d, v%d" % (dst, sh, lo + 1))
        k.I("v_and_b32 v%d, 3, v0" % vt)
        k.I("v_mov_b32 v%d, %d" % (vt + 1, EX + 10240)); k.I("v_mov_b32 v%d, %d" % (vt + 2, EX + 10256))
        k.I("v_cmp_eq_u32 vcc, %d, v%d" % (2 * par + 1, vt)); k.I("v_cndmask_b32 v%d, v%d, v%d, vcc" % (dst, vt + 2, dst))
        k.I("v_cmp_eq_u32 vcc, %d, v%d" % (2 * par, vt)); k.I("v_cndmask_b32 v%d, v%d, v%d, vcc" % (dst, dst, vt + 1))
    l45 = k.label(); l67 = k.label(); lj = k.label()
    k.I("s_cmp_ge_u32 s%d, 4" % S_WAVE); k.I("s_cbranch_scc1 %s" % l45)
    st = k.save()
    E.v(vP, "lo + w*1024", lo='v%d' % lo); E.v(vP + 1, "lo + (w + 5)*1024", lo='v%d' % lo)
    E.v(vP + 2, "lo + w*64 + 4096", lo='v%d' % (lo + 1)); k.I("v_mov_b32 v%d, v%d" % (vP + 3, vP + 1))
    k.settle(); k.I("s_branch %s" % lj)
    k.restore(st); k.place(l45)
    E.s(87, "(w&1)*128 + 9216"); bh(vP + 1, 87, 0)
    E.s(87, "(w&1)*128 + 9280"); bh(vP + 3, 87, 1)
    k.I("s_cmp_ge_u32 s%d, 6" % S_WAVE); k.I("s_cbranch_scc1 %s" % l67)
    st2 = k.save()
    E.v(vP, "lo + (w&1)*2048", lo='v%d' % lo); k.I("v_add_u32 v%d, 1024, v%d" % (vP + 2, vP))
    k.settle(); k.I("s_branch %s" % lj)
    k.restore(st2); k.place(l67)
    E.v(vP, "lo + (w&1)*128 + 4096", lo='v%d' % (lo + 1)); k.I("v_add_u32 v%d, 64, v%d" % (vP + 2, vP))
    k.settle()
    k.place(lj)
    k.I("v_lshlrev_b32 v%d, 2, v0" % vO); k.I("v_mov_b32 v%d, 0" % vZ)
    TOFF = [0, 40, None, BV - BK, BV - BK + 40]
    def reads(i, ks):
        s = i % 4; out = []
        for t in range(2):
            out.append("ds_read_b128 %s, v%d offset:%d" % (vr(FA[ks] + 4 * t, 4), vA + 2 * s + ks, t * 2048))
        for T in range(5):
            base = (vX if T == 2 else vN) + s
            for j in range(2):
                out.append("ds_read_b64_tr_b16 %s, v%d offset:%d" % (vr(FB[ks] + 4 * T + 2 * j, 2), base, (TOFF[T] or 0) + ks * 5120 + j * 1280))
        return out
    def mfmas(ks):
        return ["v_mfma_f32_16x16x32_bf16 %s, %s, %s, %s" % (vr(acc(T, t), 4), vr(FA[ks] + 4 * t, 4), vr(FB[ks] + 4 * T, 4), vr(acc(T, t), 4))
                for T in range(5) for t in range(2)]
    stamp(k, 9)
    for i in range(1, OPT.pre):
        for f in dma(i): f()
    stamp(k, 11)
    k.wait_tag("U0")
    stamp(k, 10)
    k.I("s_barrier")
    stamp(k, 1)
    for r_ in reads(0, 0): k.I(r_)
    for i in range(10):
        rq = reads(i, 1); mm = mfmas(0)
        dm = dma(OPT.pre + i) if OPT.pre + i < 4 else []
        for n in range(10):
            if n < 6: k.I(rq[2 * n]); k.I(rq[2 * n + 1])
            k.I(mm[n])
            if n % 2 == 1 and dm: dm[n // 2]()
        if i < 9:
            k.wait(lg=0); k.wait_tag("U%d" % (i + 1))
            k.I("s_barrier")
            if i in (1, 4, 8): stamp(k, {1: 2, 4: 3, 8: 4}[i])
            if i in (4, 8): stamp(k, {4: 12, 8: 13}[i], True)
            rp = reads(i + 1, 0)
        else: rp = []
        dm = dma(i + 4) if i + 4 < 10 else []
        mm = mfmas(1)
        if i == 8:
            E.v(vt + 4, "(l&3)*EXP + (EX + 10240)", EXP=EXP, EX=EX)
            k.I("v_mov_b32 v%d, 0x3f803f80" % lo); k.I("v_mov_b32 v%d, 0x3f803f80" % (lo + 1)); k.I("v_mov_b32 v%d, 0" % (lo + 2)); k.I("v_mov_b32 v%d, 0" % (lo + 3))
            k.I("ds_write2_b64 v%d, v[%d:%d], v[%d:%d] offset0:0 offset1:1" % (vt + 4, lo, lo + 1, lo, lo + 1))
            k.I("ds_write2_b64 v%d, v[%d:%d], v[%d:%d] offset0:2 offset1:3" % (vt + 4, lo + 2, lo + 3, lo + 2, lo + 3))
            E.s(87, "qd*4 + 128")
            k.I("buffer_load_dword v%d, v%d, %s, s87 offen sc1" % (vF, vZ, R(R_DBG)))
        for n in range(10):
            if n < 6 and rp: k.I(rp[2 * n]); k.I(rp[2 * n + 1])
            k.I(mm[n])
            if n % 2 == 1 and dm: dm[n // 2]()
    stamp(k, 5)
    TMP = FB[0]; PK = FB[1]
    order = [3, 4, 0, 1, 2]
    for T in order:
        regs = [acc(T, 0) + i for i in range(8)]
        if T < 2: phi(k, regs, TMP, S_L2E, S_EPS)
        if T == 2:
            lsk = k.label()
            k.I("s_cmp_ge_u32 s%d, 4" % S_WAVE); k.I("s_cbranch_scc1 %s" % lsk)
            phi(k, regs, TMP, S_L2E, S_EPS); k.settle()
            k.place(lsk)
        for i in range(4): k.I("v_cvt_pk_bf16_f32 v%d, v%d, v%d" % (PK + 4 * T + i, regs[2 * i], regs[2 * i + 1]))
        if T == 2: k.I("ds_write_b128 v%d, %s" % (vE2, vr(PK + 8, 4)))
        else: k.I("ds_write_b128 v%d, %s offset:%d" % (vE1, vr(PK + 4 * T, 4), [0, 1024, 0, 5120, 6144][T]))
    k.wait(lg=0)
    k.I("s_barrier")
    stamp(k, 6)
    XR = ACC
    xr = [ACC + 4 * i for i in range(10)] + [FA[0], FA[0] + 4, FA[1], FA[1] + 4, FB[0], FB[0] + 4]
    D1 = FB[0] + 8; D2 = FB[0] + 12
    for r in range(4):
        for o in range(4): k.I("ds_read_b128 %s, v%d offset:%d" % (vr(xr[4 * r + o], 4), vP + o, r * EXP))
    for r in range(4):
        c1 = "0" if r == 0 else vr(D1, 4); c2 = "0" if r == 0 else vr(D2, 4)
        k.I("v_mfma_f32_16x16x32_bf16 %s, %s, %s, %s" % (vr(D1, 4), vr(xr[4 * r], 4), vr(xr[4 * r + 1], 4), c1))
        k.I("v_mfma_f32_16x16x32_bf16 %s, %s, %s, %s" % (vr(D2, 4), vr(xr[4 * r + 2], 4), vr(xr[4 * r + 3], 4), c2))
    poll_dword(k, vF, vZ, R_DBG, 87, 88, 89, first_issued=True)
    E.s(88, "qd*7680 + WS_KV", WS_KV=WS_KV)
    l45 = k.label(); l67 = k.label()
    k.I("s_cmp_ge_u32 s%d, 4" % S_WAVE); k.I("s_cbranch_scc1 %s" % l45)
    st = k.save()
    E.s(89, "b + w*1024", b='s88'); E.s(90, "b + w*256 + 6144", b='s88')
    for r in range(4): k.I("buffer_atomic_add_f32 v%d, v%d, %s, s89 offen offset:%d" % (D1 + r, vO, R(R_WS), 256 * r))
    k.I("buffer_atomic_add_f32 v%d, v%d, %s, s90 offen" % (D2, vO, R(R_WS)))
    fin(k, 7)
    k.restore(st); k.place(l45)
    for r in range(4): k.I("v_add_f32 v%d, v%d, v%d" % (D1 + r, D1 + r, D2 + r))
    k.I("s_cmp_ge_u32 s%d, 6" % S_WAVE); k.I("s_cbranch_scc1 %s" % l67)
    st = k.save()
    E.s(89, "b + (w&1)*1024 + 4096", b='s88')
    for r in range(4): k.I("buffer_atomic_add_f32 v%d, v%d, %s, s89 offen offset:%d" % (D1 + r, vO, R(R_WS), 256 * r))
    fin(k, 7)
    k.restore(st); k.place(l67)
    E.s(89, "b + (w&1)*256 + 7168", b='s88')
    k.I("buffer_atomic_add_f32 v%d, v%d, %s, s89 offen" % (D1, vO, R(R_WS)))
    fin(k, 7)

def fin(k, slot):
    if OPT.stamps:
        k.I("s_waitcnt vmcnt(0)"); k.vm = []
        stamp(k, slot)
    k.I("s_endpgm")

QSLOT = 26624; QB = 16384
LQ_SYNC = 3 * QSLOT
LQ_B = LQ_SYNC + 256
def k1_q(k):
    E = Ex(k, [], ST, {'id': 's2'})
    E.s(S_Q, "id - 128")
    lb = k.label("K1_QB")
    k.I("s_cmp_ge_u32 s%d, 4" % S_WAVE); k.I("s_cbranch_scc1 %s" % lb)
    st = k.save()
    k1_qa(k)
    k.restore(st); k.place(lb)
    k1_qb(k)

def k1_qa(k):
    V = Alloc(1, 252)
    ACC = V.get(40, 4)
    FA = [V.get(8, 4), V.get(8, 4)]
    FB = [V.get(20, 4), V.get(20, 4)]
    vDA = V.get(4); vDB = V.get(3)
    vA = V.get(6); vN = V.get(3); vX = V.get(3)
    vt = V.get(6, 2); tmp = V.get(2)
    vMine = V.get(1); vBase = V.get(1); vP = V.get(4, 2); vS = V.get(1); vPQ = V.get(1)
    zt = V.get(8, 4)
    E = Ex(k, [vt + i for i in range(6)], ST, {'l': 'v0', 'w': 's%d' % S_WAVE, 'rb': 's%d' % S_RB, 'qd': 's%d' % S_QD, 'q': 's%d' % S_Q})
    acc = lambda T, t: ACC + (T * 2 + t) * 4
    k.wait(lg=0)
    stamp_setup(k)
    stamp(k, 0)
    for a in range(4):
        E.v(vDA + a, "(rb*128 + 32*w + 8*a + (l>>3))*1280 + (((l&7) ^ ((4*a + (l>>4))&7))<<4)", a=a)
    for b in range(3):
        E.v(tmp, "((l + 64*b)//10) + (w<<4)", b=b)
        E.v(tmp + 1, "(t & 51) + ((t&4)<<1) + ((t&8)>>1)", t='v%d' % tmp)
        E.v(vDB + b, "kk*3840 + ((l + 64*b)%10)*16 + qd*160", b=b, kk='v%d' % (tmp + 1))
    E.s(S_LA, "w*4096"); E.s(S_LB, "w*2560 + QB", QB=QB)
    if OPT.rot: E.s(S_U, "(3*(rb&3) + 2*(qd&3) + 1) % 10")
    else: k.I("s_mov_b32 s%d, 0" % S_U)
    srd(k, R_X, S_X, S_X + 1, 2048 * 1280)
    srd(k, R_W, S_WQKV, S_WQKV + 1, 640 * 3840)
    def dma(i):
        sl = (i % 3) * QSLOT
        def a_(a):
            k.I("s_add_u32 m0, s%d, %d" % (S_LA, sl + a * 1024))
            k.I("buffer_load_dwordx4 v%d, %s, s%d offen lds" % (vDA + a, R(R_X), S_AOFF), tag="U%d" % i)
        def b_(b):
            k.I("s_add_u32 m0, s%d, %d" % (S_LB, sl + b * 1024))
            if b == 2: k.I("s_mov_b64 exec, 0xffffffff")
            k.I("buffer_load_dwordx4 v%d, %s, s%d offen lds" % (vDB + b, R(R_W), S_BOFF), tag="U%d" % i)
            if b == 2: k.I("s_mov_b64 exec, -1")
        return [lambda: (unit_setup(k), b_(0)), lambda: b_(1), lambda: b_(2), lambda: a_(0), lambda: a_(1), lambda: a_(2), lambda: a_(3)]
    for f in dma(0): f()
    E.v(vBase, "LQ_SYNC + 0*l", LQ_SYNC=LQ_SYNC); E.v(vMine, "b + w*4", b='v%d' % vBase)
    k.I("v_mov_b32 v%d, 0" % vS); k.I("ds_write_b32 v%d, v%d" % (vMine, vS))
    k.I("ds_write_b32 v%d, v%d offset:32" % (vMine, vS))
    srd(k, R_WS, S_WS, S_WS + 1, WS_END)
    srd(k, R_DBG, S_DBG, S_DBG + 1, 256)
    for ks in range(2):
        E.v(vA + ks, "(w*32 + (l&15))*128 + (((4*ks + (l>>4)) ^ ((l&15)>>1))<<4)", ks=ks)
    E.v(tmp, "(((l>>5)<<4) + (((l>>4)&1)<<2) + ((l>>2)&3))*160")
    E.v(vN, "t + ((l&3)<<3) + QB", t='v%d' % tmp, QB=QB)
    E.v(vX, "t + (l&3)*40 + (QB + 32)", t='v%d' % tmp, QB=QB)
    for s in range(1, 3):
        for ks in range(2): k.I("v_add_u32 v%d, %d, v%d" % (vA + 2 * s + ks, s * QSLOT, vA + ks))
        k.I("v_add_u32 v%d, %d, v%d" % (vN + s, s * QSLOT, vN)); k.I("v_add_u32 v%d, %d, v%d" % (vX + s, s * QSLOT, vX))
    k.I("s_mov_b32 s%d, 0x%x" % (S_L2E, LOG2E)); k.I("s_mov_b32 s%d, 0x%x" % (S_EPS, EPS))
    for i in range(40): k.I("v_mov_b32 v%d, s%d" % (ACC + i, S_EPS))
    E.v(vPQ, "(rb*8 + 2*w)*20480 + (qd>>1)*5120 + l*16 + WS_PQ", WS_PQ=WS_PQ)
    for f in dma(1): f()
    k.I("s_or_b32 s74, s%d, s%d" % (S_WAVE, S_RB)); k.I("s_cmp_eq_u32 s74, 0"); k.I("s_cselect_b64 s[96:97], -1, 0")
    kv_zero(k, E, zt)
    stamp(k, 1)
    S = Sync(k, vMine, vBase, vP, vS, 94, 95)
    TOFF = [0, 40, 80, 120, None]
    def reads(i, ks):
        s = i % 3; out = []
        for t in range(2):
            out.append("ds_read_b128 %s, v%d offset:%d" % (vr(FA[ks] + 4 * t, 4), vA + 2 * s + ks, t * 2048))
        for T in range(5):
            base = (vX if T == 4 else vN) + s
            for j in range(2):
                out.append("ds_read_b64_tr_b16 %s, v%d offset:%d" % (vr(FB[ks] + 4 * T + 2 * j, 2), base, (TOFF[T] or 0) + ks * 5120 + j * 1280))
        return out
    def mfmas(ks):
        return ["v_mfma_f32_16x16x32_bf16 %s, %s, %s, %s" % (vr(acc(T, t), 4), vr(FB[ks] + 4 * T, 4), vr(FA[ks] + 4 * t, 4), vr(acc(T, t), 4))
                for T in range(5) for t in range(2)]
    k.wait(lg=0); k.wait_tag("U0")
    k.I("s_barrier")
    stamp(k, 2)
    for r_ in reads(0, 0): k.I(r_)
    for i in range(10):
        rq = reads(i, 1); mm = mfmas(0)
        dm = dma(2) if i == 0 else []
        for n in range(10):
            if n < 6: k.I(rq[2 * n]); k.I(rq[2 * n + 1])
            k.I(mm[n])
            if n < 7 and dm: dm[n]()
        mm = mfmas(1)
        if i < 9:
            k.wait(lg=0); k.wait_tag("U%d" % (i + 1))
            S.publish(i + 2); S.issue()
            for n in range(3): k.I(mm[n])
            S.check(i + 2)
            if i == 1: qa_signal(k, E, zt, vBase)
            if i in (1, 4, 8): stamp(k, {1: 3, 4: 4, 8: 5}[i])
            rp = reads(i + 1, 0)
            dm = dma(i + 3) if i + 3 < 10 else []
            for n in range(3, 10):
                if n < 9: k.I(rp[2 * n - 6]); k.I(rp[2 * n - 5])
                k.I(mm[n])
                if dm: dm[n - 3]()
        else:
            for n in range(10): k.I(mm[n])
    stamp(k, 6)
    TMP = FB[0]; PK = FB[1]
    for t in range(2):
        for T in range(5): phi(k, [acc(T, t) + i for i in range(4)], TMP + 4 * T, S_L2E, S_EPS)
        x = acc(4, t)
        k.I("v_permlane32_swap_b32 v%d, v%d" % (x, x + 2)); k.I("v_permlane32_swap_b32 v%d, v%d" % (x + 1, x + 3))
        k.I("v_permlane16_swap_b32 v%d, v%d" % (x, x + 1)); k.I("v_permlane16_swap_b32 v%d, v%d" % (x + 2, x + 3))
        p = PK + 10 * t
        for h, o in ((0, 0), (1, 3), (2, 5), (3, 8)):
            k.I("v_cvt_pk_bf16_f32 v%d, v%d, v%d" % (p + o, acc(h, t), acc(h, t) + 1))
            k.I("v_cvt_pk_bf16_f32 v%d, v%d, v%d" % (p + o + 1, acc(h, t) + 2, acc(h, t) + 3))
        k.I("v_cvt_pk_bf16_f32 v%d, v%d, v%d" % (p + 2, x, x + 1)); k.I("v_cvt_pk_bf16_f32 v%d, v%d, v%d" % (p + 7, x + 2, x + 3))
    lo = k.label(); le = k.label()
    k.I("s_mov_b32 s74, 20480"); k.I("s_mov_b32 s75, 1024"); k.I("s_mov_b32 s76, %d" % (20480 + 1024))
    k.I("s_bitcmp1_b32 s%d, 0" % S_QD); k.I("s_cbranch_scc1 %s" % lo)
    st = k.save()
    for t in range(2):
        p = PK + 10 * t; so = "s74" if t else "0"
        k.I("buffer_store_dwordx4 %s, v%d, %s, %s offen" % (vr(p, 4), vPQ, R(R_WS), so))
        k.I("buffer_store_dwordx4 %s, v%d, %s, %s offen offset:1024" % (vr(p + 4, 4), vPQ, R(R_WS), so))
        k.I("buffer_store_dwordx2 %s, v%d, %s, %s offen offset:2048" % (vr(p + 8, 2), vPQ, R(R_WS), so))
    k.settle(); k.I("s_branch %s" % le)
    k.restore(st); k.place(lo)
    for t in range(2):
        p = PK + 10 * t; so = "s76" if t else "s75"
        k.I("buffer_store_dwordx2 %s, v%d, %s, %s offen offset:1032" % (vr(p, 2), vPQ, R(R_WS), so))
        k.I("buffer_store_dwordx4 %s, v%d, %s, %s offen offset:2048" % (vr(p + 2, 4), vPQ, R(R_WS), so))
        k.I("buffer_store_dwordx4 %s, v%d, %s, %s offen offset:3072" % (vr(p + 6, 4), vPQ, R(R_WS), so))
    k.settle()
    k.place(le)
    fin(k, 7)

def qa_signal(k, E, zt, vBase):
    kv_flag(k, E, zt)

ROWP = 1296
LB_X = LQ_B
LB_W = LB_X + 16 * ROWP
LB_G = LB_W + 16 * ROWP
LB_END = LB_G + ROWP
def f32(x):
    import struct
    return "0x%08x" % struct.unpack("<I", struct.pack("<f", x))[0]

def trig_seq(k, ang, step, n, cdst, sdst):
    for i in range(n):
        k.I("v_cos_f32 v%d, v%d" % (cdst + i, ang)); k.I("v_sin_f32 v%d, v%d" % (sdst + i, ang))
        if i < n - 1: k.I("v_add_f32 v%d, v%d, v%d" % (ang, ang, step))

WOF_DW = [(0,'a'),(0,'b'),(0,'x'),(1,'a'),(1,'b'),(2,'a'),(2,'b'),(2,'x'),(3,'a'),(3,'b')]
def k1_qb(k):
    S_WB, S_A, S_C, S_B, S_NU = 80, 81, 82, 83, 84
    V = Alloc(1, 252)
    AF = V.get(48, 4); T = V.get(64, 4); REC = AF; WOR = V.get(40, 4)
    CA = V.get(4, 4); SA = V.get(4, 4); CB = V.get(4, 4); SB = V.get(4, 4)
    TWC = V.get(4, 2); TWS = V.get(4, 2); AR = V.get(4, 4); AI = V.get(4, 4)
    vJ = V.get(4); vL = V.get(2); vTR = V.get(1); vTK = V.get(1); vW4 = V.get(1); vW1 = V.get(1)
    vt = V.get(6, 2); tc = V.get(8, 2); ts = V.get(8, 2); PB = V.get(8, 4)
    E = Ex(k, [vt + i for i in range(4)], ST, {'l': 'v0', 'w': 's%d' % S_WAVE, 'id': 's2', 'q': 's%d' % S_Q,
            'wb': 's%d' % S_WB, 'a': 's%d' % S_A, 'c': 's%d' % S_C, 'b': 's%d' % S_B, 'nu': 's%d' % S_NU})
    E.s(S_WB, "w - 4"); E.s(S_B, "w & 1"); E.s(S_NU, "(w>>1)&1")
    if OPT.locality: E.s(S_A, "((id&3)<<1) + ((id>>2)&1)"); E.s(S_C, "(id>>3)&15")
    else: E.s(S_A, "(id>>4)&7"); E.s(S_C, "id&15")
    E.v(vL, "l*16"); E.v(vL + 1, "l*16 + 1024")
    E.s(85, "(256*a + 128*(wb&1) + 2*c + (wb>>1))*1280")
    E.s(86, "(2*(q&31) + 512*(q>>5) + 256*(wb&1))*642")
    E.s(87, "wb*(4*ROWP) + LB_X", ROWP=ROWP, LB_X=LB_X)
    k.wait(lg=0)
    srd(k, R_X, S_X, S_X + 1, 2048 * 1280)
    k.I("s_cmp_lt_u32 s%d, 2" % S_WB)
    k.I("s_cselect_b32 s88, s%d, s%d" % (S_WR, S_WI)); k.I("s_cselect_b32 s89, s%d, s%d" % (S_WR + 1, S_WI + 1))
    srd(k, R_WR, 88, 89, 2048 * 642)
    stamp_setup(k)
    stamp(k, 0)
    for part in range(2):
        if part: k.I("s_mov_b64 exec, 0x1ffff")
        for n in range(4):
            k.I("s_add_u32 m0, s87, %d" % (n * ROWP + part * 1024))
            k.I("s_add_u32 s88, s85, %d" % (n * 40960))
            k.I("buffer_load_dwordx4 v%d, %s, s88 offen lds" % (vL + part, R(R_X)))
    k.I("s_mov_b64 exec, -1")
    for part in range(2):
        if part: k.I("s_mov_b64 exec, 0x1ffff")
        for n in range(4):
            k.I("s_add_u32 m0, s87, %d" % (16 * ROWP + n * ROWP + part * 1024))
            k.I("s_add_u32 s88, s86, %d" % (n * 41088))
            k.I("buffer_load_dwordx4 v%d, %s, s88 offen lds" % (vL + part, R(R_WR)))
    k.I("s_mov_b64 exec, -1")
    srd(k, R_WS, S_WS, S_WS + 1, WS_END)
    lg = k.label(); lw = k.label()
    k.I("s_cmp_lg_u32 s%d, 7" % S_WAVE); k.I("s_cbranch_scc1 %s" % lg)
    srd(k, R_GW, S_GW, S_GW + 1, 1280)
    k.I("s_mov_b32 m0, %d" % LB_G)
    k.I("buffer_load_dwordx4 v%d, %s, 0 offen lds" % (vL, R(R_GW)))
    k.I("s_mov_b64 exec, 0xffff"); k.I("s_mov_b32 m0, %d" % (LB_G + 1024))
    k.I("buffer_load_dwordx4 v%d, %s, 0 offen lds" % (vL + 1, R(R_GW)))
    k.I("s_mov_b64 exec, -1")
    k.settle(); k.place(lg)
    k.I("s_cmp_eq_u32 s%d, 6" % S_WAVE); k.I("s_cselect_b32 s90, s%d, 1000" % S_Q)
    k.I("s_cmp_ge_u32 s90, 80"); k.I("s_cbranch_scc1 %s" % lw)
    srd(k, R_WO, S_WO, S_WO + 1, 640 * 1280)
    E.s(91, "(q//20)*204800 + (q%20)*64")
    E.v(vW1, "(l>>4)*1280 + (l&15)*4 + o", o='s91'); E.v(vW4, "(l>>4)*5120 + (l&15)*4 + o", o='s91')
    for dw in range(20):
        qq, pos = divmod(dw, 10); h, kind = WOF_DW[pos]
        bb = (4 * qq + h) * 20
        rows = {'a': (bb, bb + 1), 'b': (bb + 2, bb + 3), 'x': (bb + 16, bb + 36)}[kind]
        for hf in range(2):
            k.I("s_mov_b32 s74, %d" % (rows[hf] * 1280))
            k.I("buffer_load_dword v%d, v%d, %s, s74 offen" % (WOR + 2 * dw + hf, vW1 if kind == 'x' else vW4, R(R_WO)))
    k.settle(); k.place(lw)
    f = vt + 4; ang = vt + 5; st = vJ
    E.v(f, "(l&15) + 16*nu"); k.I("v_cvt_f32_u32 v%d, v%d" % (f, f))
    k.I("v_mul_f32 v%d, %s, v%d" % (st, f32(-1 / 40), f))
    E.v(ang, "((l>>4)&1)*4 + (l>>5)*16"); k.I("v_cvt_f32_u32 v%d, v%d" % (ang, ang))
    k.I("v_mul_f32 v%d, v%d, v%d" % (ang, ang, st))
    k.I("v_mov_b32 v%d, v%d" % (st + 1, ang))
    k.I("v_fma_f32 v%d, v%d, 4.0, v%d" % (st + 1, st, st + 1)); k.I("v_fma_f32 v%d, v%d, 4.0, v%d" % (st + 1, st, st + 1))
    trig_seq(k, ang, st, 4, tc, ts); trig_seq(k, st + 1, st, 4, tc + 4, ts + 4)
    for i in range(4):
        k.I("v_cvt_pk_bf16_f32 v%d, v%d, v%d" % (CA + i, tc + 2 * i, tc + 2 * i + 1))
        k.I("v_cvt_pk_bf16_f32 v%d, v%d, v%d" % (SA + i, ts + 2 * i, ts + 2 * i + 1))
    E.v(ang, "((l>>4)&1)*4 + 32"); k.I("v_cvt_f32_u32 v%d, v%d" % (ang, ang))
    k.I("v_mul_f32 v%d, v%d, v%d" % (ang, ang, st))
    trig_seq(k, ang, st, 4, tc, ts)
    for i in range(4): k.I("v_mov_b32 v%d, 0" % (CB + i)); k.I("v_mov_b32 v%d, 0" % (SB + i))
    k.I("s_mov_b64 exec, 0xffffffff")
    for i in range(2):
        k.I("v_cvt_pk_bf16_f32 v%d, v%d, v%d" % (CB + 2 + i, tc + 2 * i, tc + 2 * i + 1))
        k.I("v_cvt_pk_bf16_f32 v%d, v%d, v%d" % (SB + 2 + i, ts + 2 * i, ts + 2 * i + 1))
    k.I("s_mov_b64 exec, -1")
    k.I("v_mul_f32 v%d, %s, v%d" % (st, f32(-1 / 640), f))
    E.v(ang, "(l>>4)*4"); k.I("v_cvt_f32_u32 v%d, v%d" % (st + 2, ang))
    k.I("v_mul_f32 v%d, v%d, v%d" % (ang, st + 2, st))
    trig_seq(k, ang, st, 4, TWC, TWS)
    E.v(f, "l&15"); k.I("v_cvt_f32_u32 v%d, v%d" % (f, f)); k.I("v_mul_f32 v%d, %s, v%d" % (st, f32(1 / 16), f))
    k.I("v_mul_f32 v%d, v%d, v%d" % (ang, st + 2, st))
    trig_seq(k, ang, st, 4, tc, ts)
    for i in range(2):
        k.I("v_cvt_pk_bf16_f32 v%d, v%d, v%d" % (AR + i, tc + 2 * i, tc + 2 * i + 1))
        k.I("v_cvt_pk_bf16_f32 v%d, v%d, v%d" % (AR + 2 + i, ts + 2 * i, ts + 2 * i + 1))
    E.v(f, "((l&8)<<12) + ((l&8)<<28)")
    for i in range(2):
        k.I("v_xor_b32 v%d, 0x80008000, v%d" % (AI + i, AR + 2 + i)); k.I("v_xor_b32 v%d, v%d, v%d" % (AI + i, AI + i, f))
        k.I("v_xor_b32 v%d, v%d, v%d" % (AI + 2 + i, AR + i, f))
    E.v(f, "(l&15) + 16*nu")
    for r in range(4):
        E.v(ang, "j1 + 160*(l>>4) + 40*r", j1='v%d' % f, r=r)
        k.I("v_sub_u32 v%d, 640, v%d" % (tc, ang))
        k.I("v_cmp_gt_u32 vcc, 320, v%d" % ang); k.I("v_cndmask_b32 v%d, v%d, v%d, vcc" % (ang, tc, ang))
        k.I("v_lshlrev_b32 v%d, 13, v%d" % (vJ + r, ang))
        k.I("v_cmp_lt_u32 s[92:93], 20, v%d" % f)
        k.I("v_cmp_eq_u32 s[94:95], 20, v%d" % f)
        k.I("v_cmp_eq_u32 s[98:99], 0, v%d" % f)
        k.I("v_cmp_ne_u32 vcc, 320, v%d" % ang)
        k.I("s_and_b64 s[98:99], s[98:99], vcc"); k.I("s_or_b64 s[94:95], s[94:95], s[98:99]")
        k.I("s_mov_b32 s94, 0"); k.I("s_or_b64 vcc, s[92:93], s[94:95]")
        k.I("v_mov_b32 v%d, 0x%x" % (tc, OOB))
        k.I("v_cndmask_b32 v%d, v%d, v%d, vcc" % (vJ + r, vJ + r, tc))
    E.v(vTR, "(((l>>4)&1)*4 + ((l>>2)&3) + (l>>5)*16)*32 + (l&3)*8 + (b*(8*ROWP) + LB_X)", ROWP=ROWP, LB_X=LB_X)
    E.v(vTK, "(((l>>4)&1)*4 + ((l>>2)&3))*32 + (l&3)*8 + (b*(8*ROWP) + (LB_X + 1024))", ROWP=ROWP, LB_X=LB_X)
    E.s(85, "(a>>2)*4096 + ((c>>1)&1)*2048 + (16*(a&3) + 4*(c>>2) + 2*(c&1) + b)*32 + WS_X1", WS_X1=WS_X1)
    stamp(k, 1)
    k.I("s_waitcnt vmcnt(0)"); k.vm = []
    k.I("s_barrier")
    stamp(k, 2)
    af = lambda i: AF + 6 * i
    for i in range(8):
        k.I("ds_read_b64_tr_b16 %s, v%d offset:%d" % (vr(af(i), 2), vTR, i * ROWP))
        k.I("ds_read_b64_tr_b16 %s, v%d offset:%d" % (vr(af(i) + 2, 2), vTR, i * ROWP + 256))
        k.I("ds_read_b64_tr_b16 %s, v%d offset:%d" % (vr(af(i) + 4, 2), vTK, i * ROWP))
    tr = lambda i: T + 8 * i
    def m1(i):
        k.I("v_mfma_f32_16x16x32_bf16 %s, %s, %s, 0" % (vr(tr(i), 4), vr(af(i), 4), vr(CA, 4)))
        k.I("v_mfma_f32_16x16x32_bf16 %s, %s, %s, 0" % (vr(tr(i) + 4, 4), vr(af(i), 4), vr(SA, 4)))
        k.I("v_mfma_f32_16x16x32_bf16 %s, %s, %s, %s" % (vr(tr(i), 4), vr(af(i) + 2, 4), vr(CB, 4), vr(tr(i), 4)))
        k.I("v_mfma_f32_16x16x32_bf16 %s, %s, %s, %s" % (vr(tr(i) + 4, 4), vr(af(i) + 2, 4), vr(SB, 4), vr(tr(i) + 4, 4)))
    def tw(i):
        t = tr(i); p = PB + 4 * (i & 1)
        for h in (0, 2):
            k.I("v_pk_mul_f32 %s, %s, %s" % (vr(tc + h, 2), vr(t + 4 + h, 2), vr(TWS + h, 2)))
            k.I("v_pk_mul_f32 %s, %s, %s" % (vr(ts + h, 2), vr(t + h, 2), vr(TWS + h, 2)))
        for h in (0, 2):
            k.I("v_pk_fma_f32 %s, %s, %s, %s neg_lo:[0,0,1] neg_hi:[0,0,1]" % (vr(tc + h, 2), vr(t + h, 2), vr(TWC + h, 2), vr(tc + h, 2)))
            k.I("v_pk_fma_f32 %s, %s, %s, %s" % (vr(ts + h, 2), vr(t + 4 + h, 2), vr(TWC + h, 2), vr(ts + h, 2)))
        for h in (0, 2):
            k.I("v_cvt_pk_bf16_f32 v%d, v%d, v%d" % (p + h // 2, tc + h, tc + h + 1))
            k.I("v_cvt_pk_bf16_f32 v%d, v%d, v%d" % (p + 2 + h // 2, ts + h, ts + h + 1))
    def m2(i):
        t = tr(i); p = PB + 4 * (i & 1)
        k.I("v_mfma_f32_16x16x32_bf16 %s, %s, %s, 0" % (vr(t, 4), vr(AR, 4), vr(p, 4)))
        k.I("v_mfma_f32_16x16x32_bf16 %s, %s, %s, 0" % (vr(t + 4, 4), vr(AI, 4), vr(p, 4)))
    def pack(ip):
        for r in range(4):
            for c in range(2):
                k.I("v_cvt_pk_bf16_f32 v%d, v%d, v%d" % (REC + 8 * r + 4 * c + ip, tr(2 * ip) + 4 * c + r, tr(2 * ip + 1) + 4 * c + r))
    m1(0); m1(1); m1(2)
    for i in range(8):
        tw(i)
        if i + 3 < 8: m1(i + 3)
        m2(i)
        if i >= 3 and i % 2 == 1: pack((i - 3) // 2)
    pack(3)
    for r in range(4):
        for c in range(2):
            k.I("buffer_store_dwordx4 %s, v%d, %s, s85 offen offset:%d" % (vr(REC + 8 * r + 4 * c, 4), vJ + r, R(R_WS), 16 * c))
    stamp(k, 3)
    vR = vTR; vS_ = vTK
    E.v(vR, "(l&1)*(4*ROWP) + ((l>>1)&1)*642 + (l>>2)*2 + (wb*32 + LB_W)", ROWP=ROWP, LB_W=LB_W)
    E.v(vS_, "((l>>2) + 16*wb)*8192 + (l&3)*16")
    E.s(85, "((q&31)>>3)*2048 + (16*(q>>5) + ((2*q)&15))*32 + WS_WT", WS_WT=WS_WT)
    def wt_rd(it):
        for ii in range(4):
            for arr in range(2):
                k.I("ds_read_u16 v%d, v%d offset:%d" % (T + 8 * it + 2 * ii + arr, vR, arr * 8 * ROWP + ii * ROWP + it * 128))
    def wt_st(it):
        for ii in range(4):
            k.I("v_lshl_or_b32 v%d, v%d, 16, v%d" % (AF + 4 * it + ii, T + 8 * it + 2 * ii + 1, T + 8 * it + 2 * ii))
        k.I("s_add_u32 s86, s85, %d" % (it * 64 * 8192))
        k.I("buffer_store_dwordx4 %s, v%d, %s, s86 offen" % (vr(AF + 4 * it, 4), vS_, R(R_WS)))
    wt_rd(0)
    for it in range(5):
        wt_rd(it + 1)
        wt_st(it)
    l5 = k.label(); l6 = k.label(); l7 = k.label()
    k.I("s_cmp_lg_u32 s%d, 4" % S_WAVE); k.I("s_cbranch_scc1 %s" % l5)
    sv = k.save()
    k.I("s_mov_b64 exec, 15")
    wt_st(5)
    fin(k, 7)
    k.restore(sv); k.place(l5)
    k.I("s_cmp_eq_u32 s%d, 7" % S_WAVE); k.I("s_cbranch_scc1 %s" % l7)
    k.I("s_cmp_lt_u32 s90, 80"); k.I("s_cbranch_scc1 %s" % l6)
    sv = k.save()
    fin(k, 7)
    k.restore(sv); k.place(l6)
    k.I("s_mov_b32 s74, 0x05040100"); k.I("s_mov_b32 s75, 0x07060302")
    for dw in range(20):
        k.I("v_perm_b32 v%d, v%d, v%d, s74" % (T + dw, WOR + 2 * dw + 1, WOR + 2 * dw))
        k.I("v_perm_b32 v%d, v%d, v%d, s75" % (T + 20 + dw, WOR + 2 * dw + 1, WOR + 2 * dw))
    E.v(vt + 5, "2*(q%20) + ((l>>3)&1)")
    E2 = Ex(k, [vt + i for i in range(5)], ST, E.env, rng=128)
    E2.v(vR, "(tt//5)*102400 + (tt%5)*5120 + ((l>>4)*16 + (l&7)*2)*16 + ((q//20)*25600 + WS_WOF)", tt='v%d' % (vt + 5), WS_WOF=WS_WOF)
    k.I("s_mov_b32 s74, 4096")
    for c in range(5):
        for o in range(2):
            k.I("buffer_store_dwordx4 %s, v%d, %s, %s offen offset:%d" % (vr(T + 20 * o + 4 * c, 4), vR, R(R_WS), "s74" if c == 4 else "0", (1024 * c) % 4096 + 16 * o))
    fin(k, 7)
    k.restore(sv); k.place(l7)
    E.v(vR, "(l&15)*ROWP + (l>>4)*16 + LB_X", ROWP=ROWP, LB_X=LB_X)
    E.v(vS_, "(l>>4)*16 + LB_G", LB_G=LB_G)
    G0 = REC
    for half in range(2):
        for kk in range(10):
            o = (half * 10 + kk) * 64
            k.I("ds_read_b128 %s, v%d offset:%d" % (vr(T + 4 * kk, 4), vR, o))
            k.I("ds_read_b128 %s, v%d offset:%d" % (vr(WOR + 4 * kk, 4), vS_, o))
        for kk in range(10):
            k.I("v_mfma_f32_16x16x32_bf16 %s, %s, %s, %s" % (vr(G0, 4), vr(WOR + 4 * kk, 4), vr(T + 4 * kk, 4), "0" if half + kk == 0 else vr(G0, 4)))
    E.v(vR, "(256*a + 32*(l&7) + 2*c + ((l>>3)&1))*4")
    k.I("v_mul_f32 v%d, %s, v%d" % (G0, f32(-1.4426950408889634), G0))
    k.I("v_exp_f32 v%d, v%d" % (G0, G0)); k.I("v_add_f32 v%d, 1.0, v%d" % (G0, G0)); k.I("v_rcp_f32 v%d, v%d" % (G0, G0))
    k.I("s_mov_b32 s74, 0x%x" % WS_G)
    k.I("s_mov_b64 exec, 0xffff")
    k.I("buffer_store_dword v%d, v%d, %s, s74 offen" % (G0, vR, R(R_WS)))
    fin(k, 7)

def kv_zero(k, E, t):
    for i in range(4): k.I("v_mov_b32 v%d, 0" % (t + 4 + i))
    k.I("v_lshlrev_b32 v%d, 4, v0" % (t + 2))
    k.I("s_mov_b64 exec, s[96:97]")
    for h in range(2):
        E.s(88, "qd*7680 + (WS_KV + 4096*h)", WS_KV=WS_KV, h=h)
        for i in range(4):
            if h == 1 and i == 3: k.I("s_mov_b32 exec_hi, 0")
            k.I("buffer_store_dwordx4 %s, v%d, %s, s88 offen offset:%d sc0 sc1" % (vr(t + 4, 4), t + 2, R(R_WS), 1024 * i))
    k.I("s_mov_b64 exec, -1")
def kv_flag(k, E, t):
    E.s(88, "qd*4 + 128")
    k.I("v_mov_b32 v%d, 1" % (t + 1)); k.I("v_mov_b32 v%d, 0" % t)
    k.I("s_and_b64 exec, s[96:97], 1")
    k.I("buffer_store_dword v%d, v%d, %s, s88 offen sc0 sc1" % (t + 1, t, R(R_DBG)))
    k.I("s_mov_b64 exec, -1")

class ColRegs:
    def __init__(self, V):
        self.C64 = V.get(8, 4); self.S64 = V.get(8, 4); self.N64 = V.get(8, 4)
        self.C32 = V.get(8, 4); self.S32 = V.get(8, 4); self.N32 = V.get(8, 4)
        self.TC = V.get(8, 2); self.TS = V.get(8, 2)
        self.XF = V.get(32, 4)
        self.D = V.get(16, 4); self.P = V.get(8, 4); self.WW = V.get(8, 4); self.WR = V.get(8, 2); self.WI = V.get(8, 2)
        self.t1 = V.get(8, 2); self.t2 = V.get(8, 2)
        self.vX = V.get(1); self.vXR = V.get(1); self.vW = V.get(1); self.vUW = V.get(1); self.vUR = V.get(1); self.vY = V.get(1)
        self.vt = V.get(6, 2)

def col_consts(k, C, sw, LX, LU):
    vt = C.vt
    E = Ex(k, [vt + i for i in range(3)], ST, {'l': 'v0', 'w': 's%d' % sw})
    f = vt + 3; ang = vt + 4; st = vt + 5; tc = C.t1; ts = C.t2; g8 = C.P
    def pack(cd, sd, nd):
        for i in range(4):
            k.I("v_cvt_pk_bf16_f32 v%d, v%d, v%d" % (cd + i, tc + 2 * i, tc + 2 * i + 1))
            k.I("v_cvt_pk_bf16_f32 v%d, v%d, v%d" % (sd + i, ts + 2 * i, ts + 2 * i + 1))
        for i in range(4): k.I("v_xor_b32 v%d, 0x80008000, v%d" % (nd + i, sd + i))
    E.v(g8, "(l>>4)*8"); k.I("v_cvt_f32_u32 v%d, v%d" % (g8, g8))
    E.v(f, "(l&15) + 16*w"); k.I("v_cvt_f32_u32 v%d, v%d" % (f, f))
    k.I("v_mul_f32 v%d, %s, v%d" % (st, f32(1 / 64), f))
    for u in range(2):
        k.I("v_mul_f32 v%d, v%d, v%d" % (ang, g8, st))
        if u: k.I("v_fma_f32 v%d, v%d, 0.5, v%d" % (ang, f, ang))
        trig_seq(k, ang, st, 8, tc, ts)
        pack(C.C64 + 4 * u, C.S64 + 4 * u, C.N64 + 4 * u)
    k.I("v_mul_f32 v%d, %s, v%d" % (st, f32(1 / 2048), f))
    k.I("v_mul_f32 v%d, v%d, v%d" % (ang, g8, st))
    trig_seq(k, ang, st, 8, C.TC, C.TS)
    for tau in range(2):
        E.v(f, "((l>>2)&3)*8 + (l&3) + 4*tau", tau=tau); k.I("v_cvt_f32_u32 v%d, v%d" % (f, f))
        k.I("v_mul_f32 v%d, %s, v%d" % (st, f32(1 / 32), f))
        k.I("v_mul_f32 v%d, v%d, v%d" % (ang, g8, st))
        trig_seq(k, ang, st, 8, tc, ts)
        pack(C.C32 + 4 * tau, C.S32 + 4 * tau, C.N32 + 4 * tau)
    E.v(C.vXR, "(l>>5)*1024 + (l&31)*16 + LX", LX=LX)
    E.v(C.vUW, "(16*w + (l&3) + ((l&4)<<1) + ((l&8)>>1))*96 + (l>>4)*8 + LU", LU=LU)
    E.v(C.vUR, "((l>>5)*16 + ((l>>4)&1)*4 + ((l>>2)&3))*96 + (l&3)*8 + LU", LU=LU)
    E.v(C.vY, "(8*w + ((l>>1)&7))*81920 + (l&1)*64 + (l>>4)*16")

def col_addr(k, C, sw):
    E = Ex(k, [C.vt + i for i in range(3)], ST, {'l': 'v0', 'w': 's%d' % sw})
    E.v(C.vX, "(l&31)*32 + (l>>5)*16 + w*2048")
    E.v(C.vW, "l*32 + w*2048")

def col_loads(k, C, sw, sj, LX, sc=""):
    E = Ex(k, [], ST, {'w': 's%d' % sw, 'j': 's%d' % sj})
    E.s(90, "j*8192 + WS_X1", WS_X1=WS_X1); E.s(91, "j*8192 + WS_WT", WS_WT=WS_WT)
    E.s(92, "w*2048 + LX", LX=LX)
    k.I("s_mov_b32 m0, s92")
    k.I("buffer_load_dwordx4 v%d, %s, s90 offen%s lds" % (C.vX, R(R_WS), sc), tag="CX")
    k.I("s_add_u32 m0, s92, 1024"); k.I("s_add_u32 s90, s90, 1024")
    k.I("buffer_load_dwordx4 v%d, %s, s90 offen%s lds" % (C.vX, R(R_WS), sc), tag="CX")
    k.I("buffer_load_dwordx4 %s, v%d, %s, s91 offen%s" % (vr(C.WW, 4), C.vW, R(R_WS), sc))
    k.I("buffer_load_dwordx4 %s, v%d, %s, s91 offen offset:16%s" % (vr(C.WW + 4, 4), C.vW, R(R_WS), sc))

def cmul(k, C, cr, ci, conj):
    D = C.D; t1 = C.t1; t2 = C.t2
    for h in range(0, 8, 2):
        k.I("v_pk_mul_f32 %s, %s, %s" % (vr(t1 + h, 2), vr(D + 8 + h, 2), vr(ci + h, 2)))
        k.I("v_pk_mul_f32 %s, %s, %s" % (vr(t2 + h, 2), vr(D + h, 2), vr(ci + h, 2)))
    ng = " neg_lo:[0,0,1] neg_hi:[0,0,1]"
    for h in range(0, 8, 2):
        k.I("v_pk_fma_f32 %s, %s, %s, %s%s" % (vr(t1 + h, 2), vr(D + h, 2), vr(cr + h, 2), vr(t1 + h, 2), "" if conj else ng))
        k.I("v_pk_fma_f32 %s, %s, %s, %s%s" % (vr(t2 + h, 2), vr(D + 8 + h, 2), vr(cr + h, 2), vr(t2 + h, 2), ng if conj else ""))
    for h in range(0, 8, 2):
        k.I("v_cvt_pk_bf16_f32 v%d, v%d, v%d" % (C.P + h // 2, t1 + h, t1 + h + 1))
        k.I("v_cvt_pk_bf16_f32 v%d, v%d, v%d" % (C.P + 4 + h // 2, t2 + h, t2 + h + 1))

def mf(k, d, a, b, c): k.I("v_mfma_f32_16x16x32_bf16 %s, %s, %s, %s" % (vr(d, 4), vr(a, 4), vr(b, 4), "0" if c is None else vr(c, 4)))

def col_compute(k, C, sj, bar1, bar2, sc=""):
    D = C.D; XF = C.XF; P = C.P
    xf = lambda u, t, c: XF + 4 * ((u * 2 + t) * 2 + c)
    k.wait_tag("CX")
    bar1()
    for u in range(2):
        for t in range(2):
            for c in range(2):
                k.I("ds_read_b128 %s, v%d offset:%d" % (vr(xf(u, t, c), 4), C.vXR, (u * 2 + t) * 2048 + c * 512))
    for i in range(8):
        k.I("v_lshlrev_b32 v%d, 16, v%d" % (C.WR + i, C.WW + i)); k.I("v_and_b32 v%d, 0xffff0000, v%d" % (C.WI + i, C.WW + i))
    for u in range(2):
        for t in range(2):
            mf(k, D + 4 * t, xf(u, t, 0), C.C64 + 4 * u, D + 4 * t if u else None)
            mf(k, D + 8 + 4 * t, xf(u, t, 1), C.C64 + 4 * u, D + 8 + 4 * t if u else None)
        for t in range(2):
            mf(k, D + 4 * t, xf(u, t, 1), C.S64 + 4 * u, D + 4 * t)
            mf(k, D + 8 + 4 * t, xf(u, t, 0), C.N64 + 4 * u, D + 8 + 4 * t)
    cmul(k, C, C.TC, C.TS, True)
    for t in range(2):
        mf(k, D + 4 * t, C.C32 + 4 * t, P, None); mf(k, D + 8 + 4 * t, C.C32 + 4 * t, P + 4, None)
    for t in range(2):
        mf(k, D + 4 * t, C.S32 + 4 * t, P + 4, D + 4 * t); mf(k, D + 8 + 4 * t, C.N32 + 4 * t, P, D + 8 + 4 * t)
    cmul(k, C, C.WR, C.WI, False)
    for t in range(2):
        mf(k, D + 4 * t, C.C32 + 4 * t, P, None); mf(k, D + 8 + 4 * t, C.C32 + 4 * t, P + 4, None)
    for t in range(2):
        mf(k, D + 4 * t, C.N32 + 4 * t, P + 4, D + 4 * t); mf(k, D + 8 + 4 * t, C.S32 + 4 * t, P, D + 8 + 4 * t)
    cmul(k, C, C.TC, C.TS, False)
    k.I("ds_write2_b64 v%d, %s, %s offset0:0 offset1:4" % (C.vUW, vr(P, 2), vr(P + 2, 2)))
    k.I("v_add_u32 v%d, 6144, v%d" % (C.vt, C.vUW))
    k.I("ds_write2_b64 v%d, %s, %s offset0:0 offset1:4" % (C.vt, vr(P + 4, 2), vr(P + 6, 2)))
    k.wait(lg=0)
    bar2()
    for u in range(2):
        for t in range(2):
            for c in range(2):
                for jj in range(2):
                    k.I("ds_read_b64_tr_b16 %s, v%d offset:%d" % (vr(xf(u, t, c) + 2 * jj, 2), C.vUR, c * 6144 + (32 * u + 8 * jj) * 96 + 32 * t))
    E = Ex(k, [], ST, {'j': 's%d' % sj})
    E.s(90, "j*256 + WS_Y", WS_Y=WS_Y)
    k.I("s_cmp_eq_u32 s%d, 320" % sj); k.I("s_cselect_b32 s90, 0x%x, s90" % (WS_Y + 128))
    E.s(91, "j % 320")
    for u in range(2):
        for t in range(2):
            mf(k, D + 4 * t, xf(u, t, 0), C.C64 + 4 * u, D + 4 * t if u else None)
            mf(k, D + 8 + 4 * t, xf(u, t, 1), C.C64 + 4 * u, D + 8 + 4 * t if u else None)
        for t in range(2):
            mf(k, D + 4 * t, xf(u, t, 1), C.N64 + 4 * u, D + 4 * t)
            mf(k, D + 8 + 4 * t, xf(u, t, 0), C.S64 + 4 * u, D + 8 + 4 * t)
    for h in range(4): k.I("v_cvt_pk_bf16_f32 v%d, v%d, v%d" % (P + h, D + 2 * h, D + 2 * h + 1))
    k.I("buffer_store_dwordx4 %s, v%d, %s, s90 offen%s" % (vr(P, 4), C.vY, R(R_WS), sc))
    for h in range(4): k.I("v_cvt_pk_bf16_f32 v%d, v%d, v%d" % (P + 4 + h, D + 8 + 2 * h, D + 8 + 2 * h + 1))
    k.I("s_cmp_eq_u32 s91, 0"); k.I("s_cselect_b32 s90, 0x%x, s90" % OOB)
    k.I("buffer_store_dwordx4 %s, v%d, %s, s90 offen offset:128%s" % (vr(P + 4, 4), C.vY, R(R_WS), sc))

def k2(k):
    prologue(k, 321)
    V = Alloc(1, 252)
    C = ColRegs(V)
    LX = 0; LU = 8192
    col_addr(k, C, S_WAVE)
    k.wait(lg=0)
    srd(k, R_WS, S_WS, S_WS + 1, WS_END)
    stamp_setup(k); stamp(k, 0)
    col_loads(k, C, S_WAVE, 2, LX)
    col_consts(k, C, S_WAVE, LX, LU)
    stamp(k, 1)
    bar = lambda: k.I("s_barrier")
    col_compute(k, C, 2, bar, bar)
    fin(k, 7)

LP_A = 81920
def k3(k):
    S_RB3, S_CT, S_W4 = 4, 5, 6
    prologue(k, 256)
    E = Ex(k, [], ST, {'id': 's2', 'w': 's%d' % S_WAVE})
    if OPT.locality: E.s(S_RB3, "(id&7)*4 + ((id>>3)&3)"); E.s(S_CT, "id>>5")
    else: E.s(S_RB3, "id>>3"); E.s(S_CT, "id&7")
    E.s(S_W4, "w&3")
    ld = k.label("K3_D")
    k.I("s_cmp_ge_u32 s%d, 4" % S_WAVE); k.I("s_cbranch_scc1 %s" % ld)
    st = k.save()
    k3_attn(k)
    k.restore(st); k.place(ld)
    k3_dft(k)

def sel_frags(k, SEL, t):
    k.I("v_and_b32 v%d, 1, v0" % t); k.I("v_lshlrev_b32 v%d, 4, v%d" % (t, t))
    k.I("v_lshlrev_b32 v%d, v%d, 0x3f80" % (t + 1, t)) if False else None
    k.I("v_mov_b32 v%d, 0x3f80" % (t + 1)); k.I("v_lshlrev_b32 v%d, v%d, v%d" % (t + 1, t, t + 1))
    for i in range(16): k.I("v_mov_b32 v%d, 0" % (SEL + i))
    for q in range(4):
        for hf in range(2):
            m = 0x0003000300030003 << (4 * q + 2 * hf)
            k.I("s_mov_b32 exec_lo, 0x%x" % (m & 0xffffffff)); k.I("s_mov_b32 exec_hi, 0x%x" % (m >> 32))
            k.I("v_mov_b32 v%d, v%d" % (SEL + 4 * q + hf, t + 1)); k.I("v_mov_b32 v%d, v%d" % (SEL + 4 * q + 2 + hf, t + 1))
    k.I("s_mov_b64 exec, -1")

def k3_reduce(k, E, SEL, BUF, DD, tiles, vR, vO):
    k.wait(lg=0)
    k.I("s_barrier")
    stamp(k, 6)
    for n in range(len(tiles)):
        for q in range(4):
            k.I("v_add_u32 v%d, %d, v%d" % (vR + 4 + q, q * 128, vR + n)) if False else None
    for n in range(len(tiles)):
        for q in range(4):
            k.I("ds_read2st64_b64 %s, v%d offset0:0 offset1:160" % (vr(BUF + 16 * n + 4 * q, 4), vR + 4 * n + q))
    for n in range(len(tiles)):
        for q in range(4):
            mf(k, DD + 4 * n, SEL + 4 * q, BUF + 16 * n + 4 * q, DD + 4 * n if q else None)
    for n in range(len(tiles)):
        d = DD + 4 * n
        k.I("v_cvt_pk_bf16_f32 v%d, v%d, v%d" % (d, d, d + 1)); k.I("v_cvt_pk_bf16_f32 v%d, v%d, v%d" % (d + 1, d + 2, d + 3))
        k.I("buffer_store_dwordx2 %s, v%d, %s, s86 offen" % (vr(d, 2), vO + n, R(R_OUT)))
    fin(k, 7)

def red_addr(k, E, tiles, vR, vO, t):
    for n, tl in enumerate(tiles):
        E.v(vR + 4 * n, "(l>>4)*20480 + (l&15)*8 + (%s)*512" % tl)
        for q in range(1, 4): k.I("v_add_u32 v%d, %d, v%d" % (vR + 4 * n + q, q * 128, vR + 4 * n))
        E.v(t, "l + (%s)*64" % tl)
        E.v(vO + n, "(lam//20)*1120 + lam*8", lam='v%d' % t)
    E.s(86, "rb*81920 + ct*160")

def k3_attn(k):
    global STV
    V = Alloc(1, 256)
    vL = V.get(1); vG = V.get(4); vKV = V.get(1); vPW = V.get(1)
    PQ = V.get(80, 4); W = V.get(60, 4); KVF = V.get(64, 4); TMP = V.get(44, 4)
    STV = TMP + 40
    E = Ex(k, [TMP + i for i in range(4)], ST, {'l': 'v0', 'w': 's6', 'rb': 's4', 'ct': 's5'}, rng=1280)
    E.v(vL, "l*16")
    E.s(80, "w*15360 + WS_KV", WS_KV=WS_KV); E.s(81, "w*20480 + LP_A", LP_A=LP_A)
    E.s(82, "rb*81920 + w*5120 + WS_PQ", WS_PQ=WS_PQ)
    E.s(83, "(ct*4 + w)*25600 + WS_WOF", WS_WOF=WS_WOF)
    E.s(84, "rb*256 + WS_G", WS_G=WS_G)
    E.v(vKV, "(l&15)*4")
    k.wait(lg=0)
    srd(k, R_WS, S_WS, S_WS + 1, WS_END)
    stamp_setup(k); stamp(k, 0)
    for i in range(15):
        k.I("s_add_u32 m0, s81, %d" % (i * 1024))
        k.I("buffer_load_dwordx4 v%d, %s, s80 offen lds" % (vL, R(R_WS)), tag="KV")
        if i < 14: k.I("s_add_u32 s80, s80, 1024")
    def ld5(dst, sreg, step):
        for c in range(5):
            if c == 4: k.I("s_add_u32 s%d, s%d, 4096" % (sreg, sreg))
            k.I("buffer_load_dwordx4 %s, v%d, %s, s%d offen offset:%d" % (vr(dst + 4 * c, 4), vL, R(R_WS), sreg, (c * 1024) % 4096))
        k.I("s_add_u32 s%d, s%d, %d" % (sreg, sreg, step - 4096))
    for st in range(4): k.I("buffer_load_dword v%d, v%d, %s, s84 offen offset:%d" % (vG + st, vKV, R(R_WS), 64 * st))
    for st in range(4): ld5(PQ + 20 * st, 82, 20480)
    for nt in range(3): ld5(W + 20 * nt, 83, 5120)
    srd(k, R_OUT, S_OUT, S_OUT + 1, 2048 * 1280)
    E.v(vKV, "l*4 + b", b='s81')
    E.v(vPW, "(l&15)*160 + (l>>4)*8 + b", b='s81')
    for i in range(64): k.I("v_mov_b32 v%d, 0" % (KVF + i))
    EPSR = TMP + 40; RC = TMP + 36
    stamp(k, 1)
    k.wait_tag("KV")
    stamp(k, 2)
    k.I("v_mov_b32 v%d, 0x%x" % (EPSR, EPS)); k.I("v_mov_b32 v%d, 0" % (EPSR + 1)); k.I("v_mov_b32 v%d, 0x%x" % (EPSR + 2, EPS)); k.I("v_mov_b32 v%d, 0" % (EPSR + 3))
    POS = [(0, 1, 2, 0), (1, 2, 0, 1), (1, 2, 3, 0), (2, 3, 1, 1)]
    def conv(dst, h, t, e):
        a_, b_, x_, hi = POS[h]
        k.I("v_cvt_pk_bf16_f32 v%d, v%d, v%d" % (dst + a_, t, t + 1)); k.I("v_cvt_pk_bf16_f32 v%d, v%d, v%d" % (dst + b_, t + 2, t + 3))
        k.I(("v_cvt_pk_bf16_f32 v%d, 0, v%d" if hi else "v_cvt_pk_bf16_f32 v%d, v%d, 0") % (dst + x_, e))
    for qq in range(2):
        o = 30 * qq
        for i in range(15):
            k.I("ds_read2st64_b32 %s, v%d offset0:%d offset1:%d" % (vr(TMP + 2 * i, 2), vKV, o + 2 * i, o + 2 * i + 1))
        for h in range(4): conv(KVF + 32 * qq + 4 * h, h, TMP + 4 * h, TMP + 24 + h)
        k.I("s_mov_b32 exec_lo, 0x33333333"); k.I("s_mov_b32 exec_hi, 0x33333333")
        for p in range(2): conv(KVF + 32 * qq + 16 + 8 * p, 2 * p, TMP + 16 + 4 * p, TMP + 28 + p)
        k.I("s_mov_b32 exec_lo, 0xcccccccc"); k.I("s_mov_b32 exec_hi, 0xcccccccc")
        for p in range(2): conv(KVF + 32 * qq + 20 + 8 * p, 2 * p + 1, TMP + 16 + 4 * p, TMP + 28 + p)
        k.I("s_mov_b64 exec, -1")
    units = [(st, qq, p) for st in range(4) for qq in range(2) for p in range(2)]
    def s1m(n):
        st, qq, p = units[n]; b = TMP + 12 * (n % 3); base = PQ + 20 * st + 10 * qq
        for hh in range(2):
            h = 2 * p + hh
            mf(k, b + 4 * hh, KVF + 32 * qq + 4 * h, base + 2 * h, None)
            mf(k, b + 8, KVF + 32 * qq + 16 + 4 * h, base + 2 * h, b + 8 if hh else EPSR)
    def s1v(n):
        st, qq, p = units[n]; b = TMP + 12 * (n % 3); base = PQ + 20 * st + 10 * qq + 5 * p; rc = RC + 2 * (n % 2)
        k.I("v_rcp_f32 v%d, v%d" % (rc, b + 8)); k.I("v_rcp_f32 v%d, v%d" % (rc + 1, b + 10))
        k.I("v_mul_f32 v%d, v%d, v%d" % (rc, vG + st, rc)); k.I("v_mul_f32 v%d, v%d, v%d" % (rc + 1, vG + st, rc + 1))
        for hf in (0, 2):
            k.I("v_pk_mul_f32 %s, %s, %s op_sel:[0,0] op_sel_hi:[1,0]" % (vr(b + hf, 2), vr(b + hf, 2), vr(rc, 2)))
            k.I("v_pk_mul_f32 %s, %s, %s op_sel:[0,1] op_sel_hi:[1,1]" % (vr(b + 4 + hf, 2), vr(b + 4 + hf, 2), vr(rc, 2)))
        k.I("v_mul_f32 v%d, v%d, v%d" % (b + 9, b + 9, rc)); k.I("v_mul_f32 v%d, v%d, v%d" % (b + 11, b + 11, rc + 1))
        k.I("v_cvt_pk_bf16_f32 v%d, v%d, v%d" % (base, b, b + 1)); k.I("v_cvt_pk_bf16_f32 v%d, v%d, v%d" % (base + 1, b + 2, b + 3))
        k.I("v_cvt_pk_bf16_f32 v%d, v%d, v%d" % (base + 3, b + 4, b + 5)); k.I("v_cvt_pk_bf16_f32 v%d, v%d, v%d" % (base + 4, b + 6, b + 7))
        k.I("v_cvt_pk_bf16_f32 v%d, v%d, v%d" % (base + 2, b + 9, b + 11))
    s1m(0); s1m(1)
    for n in range(16):
        if n + 2 < 16: s1m(n + 2)
        s1v(n)
    ld5(KVF, 83, 5120); ld5(KVF + 20, 83, 5120)
    STV = TMP + 32
    stamp(k, 3)
    WF = [W, W + 20, W + 40, KVF, KVF + 20]
    ACC = [TMP, KVF + 40]; SEL = TMP + 16; vR = KVF + 56; vO = TMP + 36; PK = TMP + 38
    E = Ex(k, [TMP + 32 + i for i in range(3)], ST, E.env, rng=1280)
    def flush(nt):
        a = ACC[nt % 2]
        for st in range(4):
            k.I("v_cvt_pk_bf16_f32 v%d, v%d, v%d" % (a + 4 * st, a + 4 * st, a + 4 * st + 1))
            k.I("v_cvt_pk_bf16_f32 v%d, v%d, v%d" % (a + 4 * st + 1, a + 4 * st + 2, a + 4 * st + 3))
            k.I("ds_write_b64 v%d, %s offset:%d" % (vPW, vr(a + 4 * st, 2), st * 2560 + nt * 32))
    tiles = ["w", "w + 4"]
    for nt in range(5):
        a = ACC[nt % 2]
        for c in range(5):
            for st in range(4): mf(k, a + 4 * st, WF[nt] + 4 * c, PQ + 20 * st + 4 * c, a + 4 * st if c else None)
            if c == 1 and nt > 0: flush(nt - 1)
            if c == 1 and nt == 0: sel_frags(k, SEL, TMP + 32)
            if c == 3 and nt == 0: red_addr(k, E, tiles, vR, vO, TMP + 35)
    flush(4)
    STV = TMP + 40
    stamp(k, 5)
    k3_reduce(k, E, SEL, PQ, PQ + 48, tiles, vR, vO)
    STV = 252

def k3_dft(k):
    V = Alloc(1, 252)
    YF = V.get(80, 4); ACC = [V.get(16, 4), V.get(16, 4)]; AFR = [V.get(4, 4), V.get(4, 4)]
    Z0 = V.get(8, 2); Z = V.get(8, 2); SG = V.get(8, 2); RHO = V.get(2, 2); T2 = V.get(8, 2)
    vG = V.get(4); vD = V.get(1); vY = V.get(4); vPW = V.get(1); vFX = V.get(1)
    SEL = V.get(16, 4); vR = V.get(12); vO = V.get(3); vt = V.get(8, 2)
    E = Ex(k, [vt + i for i in range(4)], ST, {'l': 'v0', 'w': 's6', 'rb': 's4', 'ct': 's5'}, rng=1280)
    E.v(vD, "(l>>3)*128 + (((l&7) ^ ((l>>4)<<1))<<4)")
    E.s(80, "rb*81920 + w*20480 + WS_Y", WS_Y=WS_Y); E.s(81, "w*20480")
    E.s(84, "rb*256 + WS_G", WS_G=WS_G)
    E.v(vFX, "(l&15)*4")
    k.wait(lg=0)
    srd(k, R_WS, S_WS, S_WS + 1, WS_END)
    stamp_setup(k); stamp(k, 0)
    for i in range(20):
        k.I("s_add_u32 m0, s81, %d" % (i * 1024))
        k.I("buffer_load_dwordx4 v%d, %s, s80 offen lds" % (vD, R(R_WS)), tag="Y%d" % (i // 4))
        if i < 19: k.I("s_add_u32 s80, s80, 1024")
    for st in range(4): k.I("buffer_load_dword v%d, v%d, %s, s84 offen offset:%d" % (vG + st, vFX, R(R_WS), 64 * st))
    srd(k, R_OUT, S_OUT, S_OUT + 1, 2048 * 1280)
    for st in range(4):
        E.v(vY + st, "((l>>5)*16 + ((l>>4)&1)*4 + ((l>>2)&3))*128 + ((st ^ (((l>>4)&1)*2 + ((l>>3)&1)))<<5) + (l&3)*8 + b", st=st, b='s81')
    E.v(vPW, "(l&15)*160 + (l>>4)*8 + b", b='s81')
    fd = vt + 4; fj = vt + 5; x = vt + 6; y = vt + 7
    E.v(fd, "(l&15) + 80*ct"); k.I("v_cvt_f32_u32 v%d, v%d" % (fd, fd))
    E.v(fj, "(l>>5)*8 + ((l>>4)&1)*2 + 80*w"); k.I("v_cvt_f32_u32 v%d, v%d" % (fj, fj))
    for a_, dj in enumerate((0, 1, 4, 5)):
        k.I("v_add_f32 v%d, %s, v%d" % (y, f32(float(dj)), fj))
        k.I("v_mul_f32 v%d, v%d, v%d" % (x, y, fd))
        k.I("v_mul_f32 v%d, %s, v%d" % (T2, f32(1 / 640), x)); k.I("v_floor_f32 v%d, v%d" % (T2, T2))
        k.I("v_fma_f32 v%d, v%d, %s, v%d" % (x, T2, "s85", x)) if False else None
        k.I("v_mul_f32 v%d, %s, v%d" % (T2, f32(640.0), T2)); k.I("v_sub_f32 v%d, v%d, v%d" % (x, T2, x))
        k.I("v_mul_f32 v%d, %s, v%d" % (x, f32(1 / 640), x))
        k.I("v_cos_f32 v%d, v%d" % (Z0 + 2 * a_, x)); k.I("v_sin_f32 v%d, v%d" % (Z0 + 2 * a_ + 1, x))
        k.I("v_mul_f32 v%d, %s, v%d" % (y, f32(-1 / 40), y))
        k.I("v_cos_f32 v%d, v%d" % (SG + 2 * a_, y)); k.I("v_sin_f32 v%d, v%d" % (SG + 2 * a_ + 1, y))
    k.I("v_mul_f32 v%d, %s, v%d" % (x, f32(-1 / 40), fd))
    k.I("v_cos_f32 v%d, v%d" % (RHO, x)); k.I("v_sin_f32 v%d, v%d" % (RHO + 1, x))
    import math
    k.I("s_mov_b32 s82, %s" % f32(math.cos(2 * math.pi * 0.4))); k.I("s_mov_b32 s83, %s" % f32(-math.sin(2 * math.pi * 0.4)))
    E.v(vFX, "((l&1)<<31) + 0x3f003f00")
    k.I("s_cmp_eq_u32 s6, 0"); k.I("s_cselect_b32 s88, 0xffff, 0"); k.I("s_mov_b32 s89, 0")
    tiles = ["w + 8", "w + 12", "w + 16"]
    sel_frags(k, SEL, vt + 4)
    red_addr(k, E, tiles, vR, vO, vt + 4)
    def rot(d, z, r):
        k.I("v_pk_mul_f32 %s, %s, %s op_sel:[0,0] op_sel_hi:[0,1]" % (vr(T2 + (d & 7), 2), vr(z, 2), r))
        k.I("v_pk_fma_f32 %s, %s, %s, %s op_sel:[1,1,0] op_sel_hi:[1,0,1] neg_lo:[1,0,0]" % (vr(d, 2), vr(z, 2), r, vr(T2 + (d & 7), 2)))
    for st in range(4):
        k.I("v_sub_f32 v%d, 1.0, v%d" % (vG + st, vG + st))
        k.I("v_mul_f32 v%d, %s, v%d" % (vG + st, f32(2.0 / (2048 * 640)), vG + st))
    stamp(k, 1)
    for kk in range(5):
        k.wait_tag("Y%d" % kk)
        for st in range(4):
            for jj in range(2):
                k.I("ds_read_b64_tr_b16 %s, v%d offset:%d" % (vr(YF + 16 * kk + 4 * st + 2 * jj, 2), vY + st, kk * 4096 + jj * 1024))
    stamp(k, 2)
    def gen(nt, kk):
        src = Z0 if kk == 0 else Z
        f = AFR[(nt * 5 + kk) % 2]
        for a_ in range(4): k.I("v_cvt_pk_bf16_f32 v%d, v%d, v%d" % (f + a_, src + 2 * a_, src + 2 * a_ + 1))
        if kk == 0: k.I("v_cndmask_b32 v%d, v%d, v%d, s[88:89]" % (f, f, vFX))
        if kk < 4:
            for a_ in range(4): rot(Z + 2 * a_, src + 2 * a_, vr(RHO, 2))
        elif nt < 4:
            for a_ in range(4): rot(Z0 + 2 * a_, Z0 + 2 * a_, vr(SG + 2 * a_, 2))
            rot(RHO, RHO, "s[82:83]")
    def flush(nt):
        a = ACC[nt % 2]
        for st in range(4):
            g = vG + st; gp = vr(g & ~1, 2); sel = "op_sel:[0,%d] op_sel_hi:[1,%d]" % (g & 1, g & 1)
            k.I("v_pk_mul_f32 %s, %s, %s %s" % (vr(a + 4 * st, 2), vr(a + 4 * st, 2), gp, sel))
            k.I("v_pk_mul_f32 %s, %s, %s %s" % (vr(a + 4 * st + 2, 2), vr(a + 4 * st + 2, 2), gp, sel))
            k.I("v_cvt_pk_bf16_f32 v%d, v%d, v%d" % (a + 4 * st, a + 4 * st, a + 4 * st + 1))
            k.I("v_cvt_pk_bf16_f32 v%d, v%d, v%d" % (a + 4 * st + 1, a + 4 * st + 2, a + 4 * st + 3))
            k.I("ds_write_b64 v%d, %s offset:%d" % (vPW, vr(a + 4 * st, 2), st * 2560 + nt * 32))
    gen(0, 0)
    for nt in range(5):
        a = ACC[nt % 2]
        for kk in range(5):
            f = AFR[(nt * 5 + kk) % 2]
            n = nt * 5 + kk + 1
            if n < 25: gen(n // 5, n % 5)
            for st in range(4): mf(k, a + 4 * st, f, YF + 16 * kk + 4 * st, a + 4 * st if kk else None)
            if kk == 1 and nt > 0: flush(nt - 1)
    flush(4)
    stamp(k, 5)
    k3_reduce(k, E, SEL, YF, ACC[0], tiles, vR, vO)

def kernels():
    return [("k1_kernel", k1, 256, 512, 163840), ("k2_kernel", k2, 321, 256, 20480), ("k3_kernel", k3, 256, 512, 163840)]

def build(kernels):
    hdr = []
    for name, fn, grid, block, lds in kernels:
        hdr.append("; @launch kernel=%s grid=(%d,1,1) block=(%d,1,1) lds=%d" % (name, grid, block, lds))
    s = "\n".join(hdr) + "\n.amdgcn_target \"amdgcn-amd-amdhsa--gfx950\"\n.text\n"
    desc = ""
    nl = 0
    for i, (name, fn, grid, block, lds) in enumerate(kernels):
        k = Asm(); k.kidx = i; k.nlab = nl
        fn(k); nl = k.nlab + 1
        s += ".globl %s\n.p2align 8\n.type %s,@function\n%s:\n" % (name, name, name) + k.text()
        nv = (k.maxv + 7) // 8 * 8
        desc += (".p2align 6\n.amdhsa_kernel %s\n  .amdhsa_next_free_vgpr %d\n  .amdhsa_next_free_sgpr 102\n  .amdhsa_accum_offset %d\n"
                 "  .amdhsa_group_segment_fixed_size 0\n  .amdhsa_kernarg_size 80\n  .amdhsa_user_sgpr_count 2\n"
                 "  .amdhsa_user_sgpr_kernarg_segment_ptr 1\n  .amdhsa_system_sgpr_workgroup_id_x 1\n.end_amdhsa_kernel\n") % (name, nv, nv)
        print(name, "instrs", k.count, "vgprs", k.maxv, "sgprs", k.maxs, file=sys.stderr)
    s += ".section .rodata,\"a\"\n" + desc
    return s

if __name__ == "__main__":
    out = sys.argv[1]
    for a in sys.argv[2:]:
        kk, vv = a.split("="); setattr(OPT, kk, int(vv))
    open(out, "w").write(build(kernels()))
```

```python
import sys
from dsl import *
from expr import *

NAME = "gated_mix__linear_attn_block__spectral_gfnet__prompt"
WS_PQ  = 0x000000
WS_X1  = 0x280000
WS_WT  = 0x520000
WS_WOF = 0x7C0000
WS_KV  = 0x8A0000
WS_Y   = 0x8C0000
WS_FL  = 0xB40000
WS_G   = 0xB50000
WS_END = 0xB60000
FX, FP, FK, FY, FW = 0, 128, 256, 384, 512
WS_TS  = 0x3000000
OOB = 0x40000000
EPS = 0x358637bd
LOG2E = 0x3fb8aa3b

class Opt:
    stamps = False
    locality = True
    fuse = False
    rot = True
    pre = 2
    pbar = 1
    pf = 0
    tlb = 0
    noq = 0
    kvx = 0
    dfirst = 1
OPT = Opt()

def srd(k, dst, lo, hi, nbytes):
    k.I("s_mov_b32 s%d, s%d" % (dst, lo))
    k.I("s_and_b32 s%d, s%d, 0xffff" % (dst + 1, hi))
    k.I("s_mov_b32 s%d, 0x%x" % (dst + 2, nbytes))
    k.I("s_mov_b32 s%d, 0x20000" % (dst + 3))

S_X, S_WQKV, S_WO, S_WR, S_WI, S_GW, S_OUT, S_DBG, S_WS = 8, 10, 12, 16, 18, 20, 22, 24, 26
R_X, R_W, R_WS, R_DBG, R_WR, R_WI, R_WO, R_GW, R_OUT, R_TS = 28, 32, 36, 40, 44, 48, 52, 56, 60, 64
S_WAVE = 3
ST = [74, 75, 76, 77, 78, 79]
def R(b): return "s[%d:%d]" % (b, b + 3)

def prologue(k, nwg):
    k.I("s_load_dwordx8 s[8:15], s[0:1], 0")
    k.I("s_load_dwordx8 s[16:23], s[0:1], 32")
    k.I("s_load_dwordx4 s[24:27], s[0:1], 64")
    k.I("s_cmp_ge_u32 s2, %d" % nwg)
    lab = k.label()
    k.I("s_cbranch_scc0 %s" % lab)
    k.I("s_endpgm")
    k.place(lab)
    k.I("v_lshrrev_b32 v1, 6, v0")
    k.I("v_and_b32 v0, 63, v0")
    k.I("v_readfirstlane_b32 s%d, v1" % S_WAVE)

def stamp_setup(k):
    if not OPT.stamps: return
    k.I("s_add_u32 s64, s%d, 0x%x" % (S_WS, WS_TS))
    k.I("s_addc_u32 s65, s%d, 0" % (S_WS + 1))
    k.I("s_and_b32 s65, s65, 0xffff")
    k.I("s_mov_b32 s66, 0x800000")
    k.I("s_mov_b32 s67, 0x20000")
    k.I("s_lshl_b32 s68, s2, 3")
    k.I("s_add_u32 s68, s68, s%d" % S_WAVE)
    k.I("s_lshl_b32 s68, s68, 8")

STV = 252
def stamp(k, slot, clk=False):
    if not OPT.stamps: return
    vt = STV
    k.I("s_memtime s[70:71]" if clk else "s_memrealtime s[70:71]")
    k.I("s_waitcnt lgkmcnt(0)"); k.lg = []
    k.I("v_mov_b32 v%d, s70" % vt)
    k.I("v_mov_b32 v%d, s71" % (vt + 1))
    k.I("v_mov_b32 v%d, 0" % (vt + 2))
    k.I("s_mov_b64 s[72:73], exec")
    k.I("s_mov_b64 exec, 1")
    k.I("buffer_store_dwordx2 v[%d:%d], v%d, s[64:67], s68 offen offset:%d" % (vt, vt + 1, vt + 2, slot * 8))
    k.I("s_mov_b64 exec, s[72:73]")

def phi(k, regs, tmp, s_l2e, s_eps):
    n = len(regs)
    for i in range(n): k.I("v_mul_f32 v%d, s%d, v%d" % (tmp + i, s_l2e, regs[i]))
    for i in range(n): k.I("v_exp_f32_e64 v%d, v%d clamp" % (tmp + i, tmp + i))
    for i in range(n): k.I("v_max_f32 v%d, s%d, v%d" % (regs[i], s_eps, regs[i]))
    for i in range(n): k.I("v_add_f32 v%d, v%d, v%d" % (regs[i], regs[i], tmp + i))

class Sync:
    def __init__(self, k, vmine, vbase, vp, vt, stmp, scnt):
        self.k, self.vmine, self.vbase, self.vp, self.vt, self.s, self.sc = k, vmine, vbase, vp, vt, stmp, scnt
    def publish(self, val):
        k = self.k
        k.I("v_mov_b32 v%d, %d" % (self.vt, val))
        k.I("ds_write_b32 v%d, v%d" % (self.vmine, self.vt))
    def issue(self):
        self.k.I("ds_read_b128 v[%d:%d], v%d" % (self.vp, self.vp + 3, self.vbase))
    def check(self, val):
        k = self.k; p = self.vp
        ok = k.label(); retry = k.label()
        def body():
            k.I("v_min3_u32 v%d, v%d, v%d, v%d" % (self.vt, p, p + 1, p + 2))
            k.I("v_min_u32 v%d, v%d, v%d" % (self.vt, self.vt, p + 3))
            k.I("v_readfirstlane_b32 s%d, v%d" % (self.s, self.vt))
            k.I("s_cmp_ge_u32 s%d, %d" % (self.s, val))
        body()
        k.I("s_cbranch_scc1 %s" % ok)
        st = k.save()
        k.I("s_mov_b32 s%d, 0x40000" % self.sc)
        k.place(retry)
        k.I("s_sub_u32 s%d, s%d, 1" % (self.sc, self.sc))
        k.I("s_cbranch_scc1 %s" % ok)
        self.issue()
        k.I("s_waitcnt lgkmcnt(0)"); k.lg = []
        body()
        k.I("s_cbranch_scc0 %s" % retry)
        k.restore(st)
        k.place(ok)
    def barrier(self, val):
        self.publish(val); self.issue(); self.check(val)

def poll_dword(k, vdst, vzero, rsrc, soff, stmp, scnt, first_issued=False):
    ok = k.label(); retry = k.label()
    if not first_issued:
        k.I("buffer_load_dword v%d, v%d, %s, s%d offen sc1" % (vdst, vzero, R(rsrc), soff))
    k.I("v_readfirstlane_b32 s%d, v%d" % (stmp, vdst)); k.I("s_cmp_lg_u32 s%d, 0" % stmp); k.I("s_cbranch_scc1 %s" % ok)
    st = k.save()
    k.I("s_mov_b32 s%d, 0x20000" % scnt)
    k.place(retry)
    k.I("s_sub_u32 s%d, s%d, 1" % (scnt, scnt)); k.I("s_cbranch_scc1 %s" % ok)
    k.I("s_sleep 2")
    k.I("buffer_load_dword v%d, v%d, %s, s%d offen sc1" % (vdst, vzero, R(rsrc), soff))
    k.I("s_waitcnt vmcnt(0)"); k.vm = []
    k.I("v_readfirstlane_b32 s%d, v%d" % (stmp, vdst)); k.I("s_cmp_lg_u32 s%d, 0" % stmp); k.I("s_cbranch_scc0 %s" % retry)
    k.restore(st)
    k.place(ok)

def poll(k, vdst, vaddr, rsrc, soff, scnt, first_issued=False, off=0, sleep=1):
    ok = k.label(); retry = k.label()
    ld = "buffer_load_dword v%d, v%d, %s, %s offen offset:%d sc1" % (vdst, vaddr, R(rsrc), soff, off)
    if not first_issued: k.I(ld)
    k.I("v_cmp_ne_u32 vcc, 1, v%d" % vdst); k.I("s_cmp_eq_u64 vcc, 0"); k.I("s_cbranch_scc1 %s" % ok)
    st = k.save()
    k.I("s_mov_b32 s%d, 0x8000" % scnt)
    k.place(retry)
    k.I("s_sub_u32 s%d, s%d, 1" % (scnt, scnt)); k.I("s_cbranch_scc1 %s" % ok)
    if sleep: k.I("s_sleep %d" % sleep)
    k.I(ld)
    k.I("s_waitcnt vmcnt(0)"); k.vm = []
    k.I("v_cmp_ne_u32 vcc, 1, v%d" % vdst); k.I("s_cmp_eq_u64 vcc, 0"); k.I("s_cbranch_scc0 %s" % retry)
    k.restore(st)
    k.place(ok)

def init_issue(k, vdst, vt):
    k.I("v_and_b32 v%d, 7, v0" % vt); k.I("v_lshlrev_b32 v%d, 2, v%d" % (vt, vt))
    k.I("buffer_load_dword v%d, v%d, %s, 0 offen offset:128 sc1" % (vdst, vt, R(R_DBG)))
def init_check(k, vdst, vt, scnt):
    poll(k, vdst, vt, R_DBG, "0", scnt, first_issued=True, off=128, sleep=2)

def set_flag(k, sidx, vt):
    k.I("v_mov_b32 v%d, 1" % (vt + 1)); k.I("v_mov_b32 v%d, 0" % vt)
    k.I("s_mov_b64 exec, 1")
    k.I("buffer_store_dword v%d, v%d, %s, s%d offen sc1" % (vt + 1, vt, R(R_WS), sidx))
    k.I("s_mov_b64 exec, -1")

def arrive(k, word, last, sidx, vt, stmp):
    k.I("v_mov_b32 v%d, %d" % (vt, word * 4)); k.I("v_mov_b32 v%d, 1" % (vt + 1))
    k.I("s_mov_b64 exec, 1")
    k.I("ds_add_rtn_u32 v%d, v%d, v%d" % (vt + 2, vt, vt + 1))
    k.I("s_mov_b64 exec, -1")
    k.I("v_readfirstlane_b32 s%d, v%d" % (stmp, vt + 2))
    lab = k.label()
    k.I("s_cmp_lg_u32 s%d, %s" % (stmp, last)); k.I("s_cbranch_scc1 %s" % lab)
    st = k.save()
    set_flag(k, sidx, vt)
    k.settle()
    k.restore(st); k.hist = []
    k.place(lab)

def clean(k):
    k.I("s_waitcnt vmcnt(0) lgkmcnt(0)"); k.vm = []; k.lg = []
    k.settle()

S_RB, S_QD, S_Q, S_U, S_AOFF, S_BOFF, S_LA, S_LB, S_L2E, S_EPS = 4, 5, 6, 80, 81, 82, 83, 84, 85, 86

def l2pf(k, va, vt4):
    if not OPT.pf: return
    E = Ex(k, list(vt4), ST, {'l': 'v0', 'w': 's%d' % S_WAVE, 'id': 's2'}, rng=9600)
    E.s(92, "(w*32 + (id>>3))")
    lw = k.label(); le = k.label()
    k.I("s_cmp_ge_u32 s92, 80"); k.I("s_cbranch_scc1 %s" % lw)
    st = k.save()
    E.v(va, "(u*64 + l)*128 + (id&3)*655360", u='s92')
    k.I("buffer_load_dword v%d, v%d, %s, 0 offen" % (va, va, R(R_X)))
    st1 = k.save()
    k.I("s_branch %s" % le)
    k.restore(st); k.place(lw)
    E.v(va, "(u - 80)*64 + l", u='s92')
    E.v(va + 1, "m % 15", m='v%d' % va)
    E.v(va, "(m//15)*3840 + (r//5)*640 + r*128 + ((id>>2)&1)*640", m='v%d' % va, r='v%d' % (va + 1))
    k.I("buffer_load_dword v%d, v%d, %s, 0 offen" % (va, va, R(R_W)))
    k.settle()
    k.place(le)

def k1(k):
    prologue(k, 256)
    E = Ex(k, [], ST, {'id': 's2', 'w': 's%d' % S_WAVE})
    if OPT.locality:
        E.s(S_RB, "((id&3)<<2) + ((id>>3)&3)")
        E.s(S_QD, "(id&4) + ((id>>5)&3)")
    else:
        E.s(S_RB, "(id>>3)&15")
        E.s(S_QD, "(id + (id>>3))&7")
    lq = k.label("K1_Q")
    k.I("s_cmp_ge_u32 s2, 128"); k.I("s_cbranch_scc1 %s" % lq)
    st = k.save()
    k1_kv(k)
    k.restore(st); k.place(lq)
    k1_q(k)
    k.hist = []; k.vm = []; k.lg = []
    k.place("FINAL_A")
    k3_attn(k)
    k.hist = []; k.vm = []; k.lg = []
    k.place("FINAL_D")
    k3_dft(k)

def unit_setup(k):
    k.I("s_lshl_b32 s%d, s%d, 7" % (S_AOFF, S_U))
    k.I("s_mul_i32 s%d, s%d, 245760" % (S_BOFF, S_U))
    k.I("s_add_u32 s%d, s%d, 1" % (S_U, S_U))
    k.I("s_cmp_eq_u32 s%d, 10" % S_U)
    k.I("s_cselect_b32 s%d, 0, s%d" % (S_U, S_U))

def k1_kv(k):
    SLOT = 36864; BK = 16384; BV = 26624; EX = 2 * SLOT; EXP = 10272
    V = Alloc(1, 252)
    ACC = V.get(40, 4)
    FA = [V.get(8, 4), V.get(8, 4)]
    FB = [V.get(20, 4), V.get(20, 4)]
    vDA = V.get(2); vDB = V.get(3)
    vA = V.get(8); vN = V.get(4); vX = V.get(4)
    vt = V.get(6, 2)
    vE1 = V.get(1); vE2 = V.get(1); vP = V.get(4); vO = V.get(1); vZ = V.get(1); vF = V.get(1)
    E = Ex(k, [vt + i for i in range(6)], ST, {'l': 'v0', 'w': 's%d' % S_WAVE, 'rb': 's%d' % S_RB, 'qd': 's%d' % S_QD})
    acc = lambda T, t: ACC + (T * 2 + t) * 4
    for a in range(2):
        E.v(vDA + a, "(rb*128 + 16*w + 8*a + (l>>3))*1280 + (((l&7) ^ (4*a + (l>>4)))<<4)", a=a)
    tmp = V.get(2)
    for b in range(3):
        E.v(tmp, "((l + 64*b)//10) + ((w&3)<<4)", b=b)
        E.v(tmp + 1, "(t & 51) + ((t&4)<<1) + ((t&8)>>1)", t='v%d' % tmp)
        E.v(vDB + b, "kk*3840 + ((l + 64*b)%10)*16 + (1280 + (w>>2)*1280 + qd*160)", b=b, kk='v%d' % (tmp + 1))
    E.s(S_LA, "w*2048"); E.s(S_LB, "(w>>2)*10240 + (w&3)*2560 + BK", BK=BK)
    if OPT.rot: E.s(S_U, "(3*(rb&3) + 2*(qd&3)) % 10")
    else: k.I("s_mov_b32 s%d, 0" % S_U)
    k.wait(lg=0)
    srd(k, R_X, S_X, S_X + 1, 2048 * 1280)
    srd(k, R_W, S_WQKV, S_WQKV + 1, 640 * 3840)
    stamp_setup(k)
    stamp(k, 0)
    def dma(i, part=None):
        sl = (i % 4) * SLOT
        steps = []
        def a_(a):
            k.I("s_add_u32 m0, s%d, %d" % (S_LA, sl + a * 1024))
            k.I("buffer_load_dwordx4 v%d, %s, s%d offen lds" % (vDA + a, R(R_X), S_AOFF), tag="U%d" % i)
        def b_(b):
            k.I("s_add_u32 m0, s%d, %d" % (S_LB, sl + b * 1024))
            if b == 2: k.I("s_mov_b64 exec, 0xffffffff")
            k.I("buffer_load_dwordx4 v%d, %s, s%d offen lds" % (vDB + b, R(R_W), S_BOFF), tag="U%d" % i)
            if b == 2: k.I("s_mov_b64 exec, -1")
        return [lambda: (unit_setup(k), a_(0)), lambda: b_(0), lambda: a_(1), lambda: b_(1), lambda: b_(2)]
    for f in dma(0): f()
    pfv = V.get(2)
    l2pf(k, pfv, [vt + i for i in range(4)])
    stamp(k, 8)
    srd(k, R_WS, S_WS, S_WS + 1, WS_END)
    srd(k, R_DBG, S_DBG, S_DBG + 1, 256)
    for ks in range(2):
        E.v(vA + ks, "((w&3)*32 + (l&15))*128 + (((4*ks + (l>>4)) ^ ((l&15)>>1))<<4)", ks=ks)
    E.v(tmp, "(((l>>5)<<4) + (((l>>4)&1)<<2) + ((l>>2)&3))*160")
    E.v(vN, "t + ((l&3)<<3) + (w>>2)*80 + BK", t='v%d' % tmp, BK=BK)
    E.v(vX, "t + (l&3)*40 + (w>>2)*10240 + (BK + 32)", t='v%d' % tmp, BK=BK)
    for s in range(1, 4):
        for ks in range(2): k.I("v_add_u32 v%d, %d, v%d" % (vA + 2 * s + ks, s * SLOT, vA + ks))
        k.I("v_add_u32 v%d, %d, v%d" % (vN + s, s * SLOT, vN)); k.I("v_add_u32 v%d, %d, v%d" % (vX + s, s * SLOT, vX))
    k.I("s_mov_b32 s%d, 0x%x" % (S_L2E, LOG2E)); k.I("s_mov_b32 s%d, 0x%x" % (S_EPS, EPS))
    k.I("s_cmp_lt_u32 s%d, 4" % S_WAVE); k.I("s_cselect_b32 s74, s%d, 0" % S_EPS)
    for T in range(5):
        src = "s%d" % S_EPS if T < 2 else ("s74" if T == 2 else "0")
        for i in range(8): k.I("v_mov_b32 v%d, %s" % (acc(T, 0) + i, src))
    E.v(vE1, "(w&3)*EXP + (w>>2)*2048 + l*16 + EX", EXP=EXP, EX=EX)
    E.v(vE2, "(w&3)*EXP + (w>>2)*5120 + l*16 + (EX + 4096)", EXP=EXP, EX=EX)
    lo = V.get(4)
    E.v(lo, "l*16 + EX", EX=EX)
    E.v(lo + 1, "(((l>>4)<<4) + ((l>>2)&3))*16 + EX", EX=EX)
    def bh(dst, sh, par):
        k.I("v_add_u32 v%d, s%d, v%d" % (dst, sh, lo + 1))
        k.I("v_and_b32 v%d, 3, v0" % vt)
        k.I("v_mov_b32 v%d, %d" % (vt + 1, EX + 10240)); k.I("v_mov_b32 v%d, %d" % (vt + 2, EX + 10256))
        k.I("v_cmp_eq_u32 vcc, %d, v%d" % (2 * par + 1, vt)); k.I("v_cndmask_b32 v%d, v%d, v%d, vcc" % (dst, vt + 2, dst))
        k.I("v_cmp_eq_u32 vcc, %d, v%d" % (2 * par, vt)); k.I("v_cndmask_b32 v%d, v%d, v%d, vcc" % (dst, dst, vt + 1))
    l45 = k.label(); l67 = k.label(); lj = k.label()
    k.I("s_cmp_ge_u32 s%d, 4" % S_WAVE); k.I("s_cbranch_scc1 %s" % l45)
    st = k.save()
    E.v(vP, "lo + w*1024", lo='v%d' % lo); E.v(vP + 1, "lo + (w + 5)*1024", lo='v%d' % lo)
    E.v(vP + 2, "lo + w*64 + 4096", lo='v%d' % (lo + 1)); k.I("v_mov_b32 v%d, v%d" % (vP + 3, vP + 1))
    k.settle(); k.I("s_branch %s" % lj)
    k.restore(st); k.place(l45)
    E.s(87, "(w&1)*128 + 9216"); bh(vP + 1, 87, 0)
    E.s(87, "(w&1)*128 + 9280"); bh(vP + 3, 87, 1)
    k.I("s_cmp_ge_u32 s%d, 6" % S_WAVE); k.I("s_cbranch_scc1 %s" % l67)
    st2 = k.save()
    E.v(vP, "lo + (w&1)*2048", lo='v%d' % lo); k.I("v_add_u32 v%d, 1024, v%d" % (vP + 2, vP))
    k.settle(); k.I("s_branch %s" % lj)
    k.restore(st2); k.place(l67)
    E.v(vP, "lo + (w&1)*128 + 4096", lo='v%d' % (lo + 1)); k.I("v_add_u32 v%d, 64, v%d" % (vP + 2, vP))
    k.settle()
    k.place(lj)
    k.I("v_lshlrev_b32 v%d, 2, v0" % vO); k.I("v_mov_b32 v%d, 0" % vZ)
    TOFF = [0, 40, None, BV - BK, BV - BK + 40]
    def reads(i, ks):
        s = i % 4; out = []
        for t in range(2):
            out.append("ds_read_b128 %s, v%d offset:%d" % (vr(FA[ks] + 4 * t, 4), vA + 2 * s + ks, t * 2048))
        for T in range(5):
            base = (vX if T == 2 else vN) + s
            for j in range(2):
                out.append("ds_read_b64_tr_b16 %s, v%d offset:%d" % (vr(FB[ks] + 4 * T + 2 * j, 2), base, (TOFF[T] or 0) + ks * 5120 + j * 1280))
        return out
    def mfmas(ks):
        return ["v_mfma_f32_16x16x32_bf16 %s, %s, %s, %s" % (vr(acc(T, t), 4), vr(FA[ks] + 4 * t, 4), vr(FB[ks] + 4 * T, 4), vr(acc(T, t), 4))
                for T in range(5) for t in range(2)] if OPT.kvx != 2 else ["s_nop 0"] * 10
    stamp(k, 9)
    for i in range(1, OPT.pre):
        for f in dma(i): f()
    stamp(k, 11)
    k.wait_tag("U0")
    stamp(k, 10)
    k.I("s_barrier")
    stamp(k, 1)
    for r_ in reads(0, 0): k.I(r_)
    for i in range(10):
        rq = reads(i, 1); mm = mfmas(0)
        dm = dma(OPT.pre + i) if OPT.pre + i < 4 else []
        for n in range(10):
            if n < 6: k.I(rq[2 * n]); k.I(rq[2 * n + 1])
            k.I(mm[n])
            if n % 2 == 1 and dm: dm[n // 2]()
        if i < 9:
            k.wait(lg=0); k.wait_tag("U%d" % (i + 1))
            k.I("s_barrier")
            if i in (1, 4, 8): stamp(k, {1: 2, 4: 3, 8: 4}[i])
            if i in (4, 8): stamp(k, {4: 12, 8: 13}[i], True)
            rp = reads(i + 1, 0)
        else: rp = []
        dm = dma(i + 4) if (i + 4 < 10 and OPT.kvx != 1) else []
        mm = mfmas(1)
        if i == 8:
            E.v(vt + 4, "(l&3)*EXP + (EX + 10240)", EXP=EXP, EX=EX)
            k.I("v_mov_b32 v%d, 0x3f803f80" % lo); k.I("v_mov_b32 v%d, 0x3f803f80" % (lo + 1)); k.I("v_mov_b32 v%d, 0" % (lo + 2)); k.I("v_mov_b32 v%d, 0" % (lo + 3))
            k.I("ds_write2_b64 v%d, v[%d:%d], v[%d:%d] offset0:0 offset1:1" % (vt + 4, lo, lo + 1, lo, lo + 1))
            k.I("ds_write2_b64 v%d, v[%d:%d], v[%d:%d] offset0:2 offset1:3" % (vt + 4, lo + 2, lo + 3, lo + 2, lo + 3))
            init_issue(k, vF, vZ)
        for n in range(10):
            if n < 6 and rp: k.I(rp[2 * n]); k.I(rp[2 * n + 1])
            k.I(mm[n])
            if n % 2 == 1 and dm: dm[n // 2]()
    stamp(k, 5)
    TMP = FB[0]; PK = FB[1]
    order = [3, 4, 0, 1, 2]
    for T in order:
        regs = [acc(T, 0) + i for i in range(8)]
        if T < 2: phi(k, regs, TMP, S_L2E, S_EPS)
        if T == 2:
            lsk = k.label()
            k.I("s_cmp_ge_u32 s%d, 4" % S_WAVE); k.I("s_cbranch_scc1 %s" % lsk)
            phi(k, regs, TMP, S_L2E, S_EPS); k.settle()
            k.place(lsk)
        for i in range(4): k.I("v_cvt_pk_bf16_f32 v%d, v%d, v%d" % (PK + 4 * T + i, regs[2 * i], regs[2 * i + 1]))
        if T == 2: k.I("ds_write_b128 v%d, %s" % (vE2, vr(PK + 8, 4)))
        else: k.I("ds_write_b128 v%d, %s offset:%d" % (vE1, vr(PK + 4 * T, 4), [0, 1024, 0, 5120, 6144][T]))
    k.wait(lg=0)
    k.I("s_barrier")
    stamp(k, 6)
    XR = ACC
    xr = [ACC + 4 * i for i in range(10)] + [FA[0], FA[0] + 4, FA[1], FA[1] + 4, FB[0], FB[0] + 4]
    D1 = FB[0] + 8; D2 = FB[0] + 12
    for r in range(4):
        for o in range(4): k.I("ds_read_b128 %s, v%d offset:%d" % (vr(xr[4 * r + o], 4), vP + o, r * EXP))
    for r in range(4):
        c1 = "0" if r == 0 else vr(D1, 4); c2 = "0" if r == 0 else vr(D2, 4)
        k.I("v_mfma_f32_16x16x32_bf16 %s, %s, %s, %s" % (vr(D1, 4), vr(xr[4 * r], 4), vr(xr[4 * r + 1], 4), c1))
        k.I("v_mfma_f32_16x16x32_bf16 %s, %s, %s, %s" % (vr(D2, 4), vr(xr[4 * r + 2], 4), vr(xr[4 * r + 3], 4), c2))
    init_check(k, vF, vZ, 89)
    E.s(88, "qd*7680 + WS_KV", WS_KV=WS_KV)
    l45 = k.label(); l67 = k.label(); ld = k.label()
    k.I("s_cmp_ge_u32 s%d, 4" % S_WAVE); k.I("s_cbranch_scc1 %s" % l45)
    st = k.save()
    E.s(89, "b + w*1024", b='s88'); E.s(90, "b + w*256 + 6144", b='s88')
    for r in range(4): k.I("buffer_atomic_add_f32 v%d, v%d, %s, s89 offen offset:%d sc1" % (D1 + r, vO, R(R_WS), 256 * r))
    k.I("buffer_atomic_add_f32 v%d, v%d, %s, s90 offen sc1" % (D2, vO, R(R_WS)))
    k.settle(); k.I("s_branch %s" % ld)
    k.restore(st); k.place(l45)
    for r in range(4): k.I("v_add_f32 v%d, v%d, v%d" % (D1 + r, D1 + r, D2 + r))
    k.I("s_cmp_ge_u32 s%d, 6" % S_WAVE); k.I("s_cbranch_scc1 %s" % l67)
    st = k.save()
    E.s(89, "b + (w&1)*1024 + 4096", b='s88')
    for r in range(4): k.I("buffer_atomic_add_f32 v%d, v%d, %s, s89 offen offset:%d sc1" % (D1 + r, vO, R(R_WS), 256 * r))
    k.settle(); k.I("s_branch %s" % ld)
    k.restore(st); k.place(l67)
    E.s(89, "b + (w&1)*256 + 7168", b='s88')
    k.I("buffer_atomic_add_f32 v%d, v%d, %s, s89 offen sc1" % (D1, vO, R(R_WS)))
    k.settle()
    k.place(ld)
    E.s(89, "(qd*16 + rb)*64 + (WS_FL + FK*64)", WS_FL=WS_FL, FK=FK)
    clean(k)
    k.I("s_barrier")
    stamp(k, 7)
    l1 = k.label()
    k.I("s_cmp_lg_u32 s%d, 0" % S_WAVE); k.I("s_cbranch_scc1 %s" % l1)
    set_flag(k, 89, vt)
    k.settle()
    k.place(l1)
    E.s(S_RB, "2*rb + 1")
    k.I("s_cmp_lt_u32 s%d, 4" % S_WAVE); k.I("s_cbranch_scc1 FINAL_A")
    k.I("s_branch FINAL_D")

def fin(k, slot):
    if OPT.stamps:
        k.I("s_waitcnt vmcnt(0)"); k.vm = []
        stamp(k, slot)
    k.I("s_endpgm")

QSLOT = 26624; QB = 16384
L_GATE = 256; L_RING = 1536
L_F = L_RING + 3 * QSLOT
LQ_B = L_F
W_FP, W_FX, W_FY = 8, 9, 10
def k1_q(k):
    E = Ex(k, [], ST, {'id': 's2'})
    E.s(S_Q, "id - 128")
    lb = k.label("K1_QB")
    k.I("s_cmp_ge_u32 s%d, 4" % S_WAVE); k.I("s_cbranch_scc1 %s" % lb)
    st = k.save()
    k1_qa(k)
    k.restore(st); k.place(lb)
    k1_qb(k)

def k1_qa(k):
    S_UR = 87
    V = Alloc(1, 252)
    ACC = V.get(40, 4); GA = V.get(8, 4)
    FA = [V.get(8, 4), V.get(8, 4)]
    FB = [V.get(20, 4), V.get(20, 4)]
    FG = [V.get(4, 4), V.get(4, 4)]
    vDA = V.get(4); vDB = V.get(3)
    vA = V.get(6); vN = V.get(3); vX = V.get(3)
    vt = V.get(6, 2); tmp = V.get(2)
    vMine = V.get(1); vBase = V.get(1); vP = V.get(4, 2); vS = V.get(1); vPQ = V.get(1)
    vGb = V.get(1); vG = V.get(1); vI = V.get(2)
    zt = V.get(8, 4)
    E = Ex(k, [vt + i for i in range(6)], ST, {'l': 'v0', 'w': 's%d' % S_WAVE, 'rb': 's%d' % S_RB, 'qd': 's%d' % S_QD, 'q': 's%d' % S_Q})
    acc = lambda T, t: ACC + (T * 2 + t) * 4
    k.I("v_lshlrev_b32 v%d, 2, v0" % vt); k.I("v_mov_b32 v%d, 0" % vS); k.I("ds_write_b32 v%d, v%d" % (vt, vS))
    for a in range(4):
        E.v(vDA + a, "(rb*128 + 32*w + 8*a + (l>>3))*1280 + (((l&7) ^ ((4*a + (l>>4))&7))<<4)", a=a)
    for b in range(3):
        E.v(tmp, "((l + 64*b)//10) + (w<<4)", b=b)
        E.v(tmp + 1, "(t & 51) + ((t&4)<<1) + ((t&8)>>1)", t='v%d' % tmp)
        E.v(vDB + b, "kk*3840 + ((l + 64*b)%10)*16 + qd*160", b=b, kk='v%d' % (tmp + 1))
    E.s(S_LA, "w*4096 + L_RING", L_RING=L_RING); E.s(S_LB, "w*2560 + (QB + L_RING)", QB=QB, L_RING=L_RING)
    if OPT.rot: E.s(S_U, "(3*(rb&3) + 2*(qd&3) + 1) % 10")
    else: k.I("s_mov_b32 s%d, 0" % S_U)
    k.I("s_lshl_b32 s%d, s%d, 7" % (S_UR, S_U))
    k.wait(lg=0)
    stamp_setup(k)
    stamp(k, 0)
    srd(k, R_X, S_X, S_X + 1, 2048 * 1280)
    srd(k, R_W, S_WQKV, S_WQKV + 1, 640 * 3840)
    srd(k, R_WS, S_WS, S_WS + 1, WS_END)
    srd(k, R_DBG, S_DBG, S_DBG + 1, 256)
    k.I("s_barrier")
    k.I("s_or_b32 s74, s%d, s%d" % (S_WAVE, S_RB)); k.I("s_cmp_eq_u32 s74, 0"); k.I("s_cselect_b64 s[96:97], -1, 0")
    kv_zero(k, E, zt)
    def dma(i):
        sl = (i % 3) * QSLOT
        def a_(a):
            k.I("s_add_u32 m0, s%d, %d" % (S_LA, sl + a * 1024))
            k.I("buffer_load_dwordx4 v%d, %s, s%d offen lds" % (vDA + a, R(R_X), S_AOFF), tag="U%d" % i)
        def b_(b):
            k.I("s_add_u32 m0, s%d, %d" % (S_LB, sl + b * 1024))
            if b == 2: k.I("s_mov_b64 exec, 0xffffffff")
            k.I("buffer_load_dwordx4 v%d, %s, s%d offen lds" % (vDB + b, R(R_W), S_BOFF), tag="U%d" % i)
            if b == 2: k.I("s_mov_b64 exec, -1")
        return [lambda: (unit_setup(k), b_(0)), lambda: b_(1), lambda: b_(2), lambda: a_(0), lambda: a_(1), lambda: a_(2), lambda: a_(3)]
    srd(k, R_GW, S_GW, S_GW + 1, 1280)
    E.v(vG, "l*16 + w*320"); E.s(88, "w*320 + L_GATE", L_GATE=L_GATE)
    k.I("s_mov_b32 m0, s88"); k.I("s_mov_b64 exec, 0xfffff")
    k.I("buffer_load_dwordx4 v%d, %s, 0 offen lds" % (vG, R(R_GW)), tag="U0")
    k.I("s_mov_b64 exec, -1")
    for f in dma(0): f()
    k.I("v_mov_b32 v%d, 0" % vBase); E.v(vMine, "w*4 + 0*l")
    k.I("v_mov_b32 v%d, s%d" % (vMine, S_WAVE)); k.I("v_lshlrev_b32 v%d, 2, v%d" % (vMine, vMine))
    for ks in range(2):
        E.v(vA + ks, "(w*32 + (l&15))*128 + (((4*ks + (l>>4)) ^ ((l&15)>>1))<<4) + L_RING", ks=ks, L_RING=L_RING)
    E.v(tmp, "(((l>>5)<<4) + (((l>>4)&1)<<2) + ((l>>2)&3))*160")
    E.v(vN, "t + ((l&3)<<3) + QB", t='v%d' % tmp, QB=QB + L_RING)
    E.v(vX, "t + (l&3)*40 + (QB + 32)", t='v%d' % tmp, QB=QB + L_RING)
    for s in range(1, 3):
        for ks in range(2): k.I("v_add_u32 v%d, %d, v%d" % (vA + 2 * s + ks, s * QSLOT, vA + ks))
        k.I("v_add_u32 v%d, %d, v%d" % (vN + s, s * QSLOT, vN)); k.I("v_add_u32 v%d, %d, v%d" % (vX + s, s * QSLOT, vX))
    E.v(vGb, "(l>>4)*16 + L_GATE", L_GATE=L_GATE)
    k.I("s_mov_b32 s%d, 0x%x" % (S_L2E, LOG2E)); k.I("s_mov_b32 s%d, 0x%x" % (S_EPS, EPS))
    for i in range(40): k.I("v_mov_b32 v%d, s%d" % (ACC + i, S_EPS))
    for i in range(8): k.I("v_mov_b32 v%d, 0" % (GA + i))
    E.v(vPQ, "(rb*8 + 2*w)*20480 + (qd>>1)*5120 + l*16 + WS_PQ", WS_PQ=WS_PQ)
    for f in dma(1): f()
    k.wait_tag("Z")
    kv_flag(k, E, zt)
    stamp(k, 1)
    S = Sync(k, vMine, vBase, vP, vS, 94, 95)
    TOFF = [0, 40, 80, 120, None]
    def gadv():
        k.I("v_add_u32 v%d, s%d, v%d" % (vG, S_UR, vGb))
        k.I("s_add_u32 s%d, s%d, 128" % (S_UR, S_UR)); k.I("s_cmp_eq_u32 s%d, 1280" % S_UR); k.I("s_cselect_b32 s%d, 0, s%d" % (S_UR, S_UR))
    def reads(i, ks):
        s = i % 3; out = []
        for t in range(2):
            out.append("ds_read_b128 %s, v%d offset:%d" % (vr(FA[ks] + 4 * t, 4), vA + 2 * s + ks, t * 2048))
        for T in range(5):
            base = (vX if T == 4 else vN) + s
            for j in range(2):
                out.append("ds_read_b64_tr_b16 %s, v%d offset:%d" % (vr(FB[ks] + 4 * T + 2 * j, 2), base, (TOFF[T] or 0) + ks * 5120 + j * 1280))
        out.append("ds_read_b128 %s, v%d offset:%d" % (vr(FG[ks], 4), vG, ks * 64))
        out.append(None)
        return out
    def mfmas(ks):
        return ["v_mfma_f32_16x16x32_bf16 %s, %s, %s, %s" % (vr(acc(T, t), 4), vr(FB[ks] + 4 * T, 4), vr(FA[ks] + 4 * t, 4), vr(acc(T, t), 4))
                for T in range(5) for t in range(2)] + \
               ["v_mfma_f32_16x16x32_bf16 %s, %s, %s, %s" % (vr(GA + 4 * t, 4), vr(FG[ks], 4), vr(FA[ks] + 4 * t, 4), vr(GA + 4 * t, 4)) for t in range(2)]
    def I2(lst, n):
        for x in lst[2 * n:2 * n + 2]:
            if x: k.I(x)
    k.wait_tag("U0")
    S.barrier(1)
    stamp(k, 2)
    gadv()
    for r_ in reads(0, 0):
        if r_: k.I(r_)
    for i in range(10):
        rq = reads(i, 1); mm = mfmas(0)
        dm = dma(2) if i == 0 else []
        for n in range(12):
            if n < 7: I2(rq, n)
            k.I(mm[n])
            if n < 7 and dm: dm[n]()
        mm = mfmas(1)
        if i < 9:
            k.wait(lg=0); k.wait_tag("U%d" % (i + 1))
            S.publish(i + 2); S.issue()
            for n in range(3): k.I(mm[n])
            S.check(i + 2)
            if i in (1, 4, 8): stamp(k, {1: 3, 4: 4, 8: 5}[i])
            gadv()
            rp = reads(i + 1, 0)
            dm = dma(i + 3) if i + 3 < 10 else []
            for n in range(3, 12):
                if n < 10: I2(rp, n - 3)
                k.I(mm[n])
                if dm and n < 10: dm[n - 3]()
            if i == 8: init_issue(k, vI, vI + 1)
        else:
            k.wait(lg=0)
            S.publish(11)
            for n in range(12): k.I(mm[n])
    stamp(k, 6)
    TMP = FB[0]; PK = FB[1]
    for t in range(2):
        for T in range(5): phi(k, [acc(T, t) + i for i in range(4)], TMP + 4 * T, S_L2E, S_EPS)
        x = acc(4, t)
        k.I("v_permlane32_swap_b32 v%d, v%d" % (x, x + 2)); k.I("v_permlane32_swap_b32 v%d, v%d" % (x + 1, x + 3))
        k.I("v_permlane16_swap_b32 v%d, v%d" % (x, x + 1)); k.I("v_permlane16_swap_b32 v%d, v%d" % (x + 2, x + 3))
        p = PK + 10 * t
        for h, o in ((0, 0), (1, 3), (2, 5), (3, 8)):
            k.I("v_cvt_pk_bf16_f32 v%d, v%d, v%d" % (p + o, acc(h, t), acc(h, t) + 1))
            k.I("v_cvt_pk_bf16_f32 v%d, v%d, v%d" % (p + o + 1, acc(h, t) + 2, acc(h, t) + 3))
        k.I("v_cvt_pk_bf16_f32 v%d, v%d, v%d" % (p + 2, x, x + 1)); k.I("v_cvt_pk_bf16_f32 v%d, v%d, v%d" % (p + 7, x + 2, x + 3))
    lo = k.label(); le = k.label()
    k.I("s_mov_b32 s74, 20480"); k.I("s_mov_b32 s75, 1024"); k.I("s_mov_b32 s76, %d" % (20480 + 1024))
    k.I("s_bitcmp1_b32 s%d, 0" % S_QD); k.I("s_cbranch_scc1 %s" % lo)
    st = k.save()
    for t in range(2):
        p = PK + 10 * t; so = "s74" if t else "0"
        k.I("buffer_store_dwordx4 %s, v%d, %s, %s offen sc1" % (vr(p, 4), vPQ, R(R_WS), so))
        k.I("buffer_store_dwordx4 %s, v%d, %s, %s offen offset:1024 sc1" % (vr(p + 4, 4), vPQ, R(R_WS), so))
        k.I("buffer_store_dwordx2 %s, v%d, %s, %s offen offset:2048 sc1" % (vr(p + 8, 2), vPQ, R(R_WS), so))
    k.settle(); k.I("s_branch %s" % le)
    k.restore(st); k.place(lo)
    for t in range(2):
        p = PK + 10 * t; so = "s76" if t else "s75"
        k.I("buffer_store_dwordx2 %s, v%d, %s, %s offen offset:1032 sc1" % (vr(p, 2), vPQ, R(R_WS), so))
        k.I("buffer_store_dwordx4 %s, v%d, %s, %s offen offset:2048 sc1" % (vr(p + 2, 4), vPQ, R(R_WS), so))
        k.I("buffer_store_dwordx4 %s, v%d, %s, %s offen offset:3072 sc1" % (vr(p + 6, 4), vPQ, R(R_WS), so))
    k.settle()
    k.place(le)
    k.I("s_mov_b64 exec, 0xffff0000"); k.I("v_mov_b32 v%d, v%d" % (GA, GA + 4)); k.I("s_mov_b64 exec, -1")
    k.I("v_mul_f32 v%d, %s, v%d" % (GA, f32(-1.4426950408889634), GA))
    k.I("v_exp_f32 v%d, v%d" % (GA, GA)); k.I("v_add_f32 v%d, 1.0, v%d" % (GA, GA)); k.I("v_rcp_f32 v%d, v%d" % (GA, GA))
    E.s(88, "(rb*8 + qd)*512 + w*128 + WS_G", WS_G=WS_G)
    k.I("v_lshlrev_b32 v%d, 2, v0" % vG)
    k.I("s_mov_b64 exec, 0xffffffff")
    k.I("buffer_store_dword v%d, v%d, %s, s88 offen sc1" % (GA, vG, R(R_WS)))
    k.I("s_mov_b64 exec, -1")
    S.issue()
    init_check(k, vI, vI + 1, 95)
    E.s(88, "(rb*8 + qd)*64 + (WS_FL + FP*64)", WS_FL=WS_FL, FP=FP)
    S.check(11)
    clean(k)
    arrive(k, W_FP, 3, 88, zt, 94)
    stamp(k, 7)
    E.s(S_RB, "2*rb")
    clean(k)
    k.I("s_branch FINAL_A")

ROWP = 1296
LB_X = LQ_B
LB_W = LB_X + 16 * ROWP
LB_END = LB_W + 16 * ROWP
SEGP = 2576
LB_T = LB_END
def f32(x):
    import struct
    return "0x%08x" % struct.unpack("<I", struct.pack("<f", x))[0]

def trig_seq(k, ang, step, n, cdst, sdst):
    for i in range(n):
        k.I("v_cos_f32 v%d, v%d" % (cdst + i, ang)); k.I("v_sin_f32 v%d, v%d" % (sdst + i, ang))
        if i < n - 1: k.I("v_add_f32 v%d, v%d, v%d" % (ang, ang, step))

WOF_DW = [(0,'a'),(0,'b'),(0,'x'),(1,'a'),(1,'b'),(2,'a'),(2,'b'),(2,'x'),(3,'a'),(3,'b')]
def k1_qb(k):
    S_WB, S_A, S_C, S_B, S_NU = 80, 81, 82, 83, 84
    MSK = [48, 50, 56, 58]
    V = Alloc(1, 252)
    AF = V.get(48, 4); T = V.get(64, 4); REC = AF; WOR = V.get(40, 4)
    CA = V.get(4, 4); SA = V.get(4, 4); CB = V.get(4, 4); SB = V.get(4, 4)
    TWC = V.get(4, 2); TWS = V.get(4, 2); AR = V.get(4, 4); AI = V.get(4, 4)
    vJ = V.get(4); vL = V.get(2); vTR = V.get(1); vTK = V.get(1); vW4 = V.get(1); vW1 = V.get(1)
    vt = V.get(6, 2); tc = V.get(8, 2); ts = V.get(8, 2); PB = V.get(8, 4)
    vMine = V.get(1); vBase = V.get(1); vP = V.get(4, 2); vS = V.get(1); vI = V.get(2)
    S = Sync(k, vMine, vBase, vP, vS, 96, 97)
    k.I("s_setprio 3")
    E = Ex(k, [vt + i for i in range(4)], ST, {'l': 'v0', 'w': 's%d' % S_WAVE, 'id': 's2', 'q': 's%d' % S_Q,
            'wb': 's%d' % S_WB, 'a': 's%d' % S_A, 'c': 's%d' % S_C, 'b': 's%d' % S_B, 'nu': 's%d' % S_NU})
    E.s(S_WB, "w - 4"); E.s(S_B, "w & 1"); E.s(S_NU, "(w>>1)&1")
    if OPT.locality: E.s(S_A, "((id&3)<<1) + ((id>>2)&1)"); E.s(S_C, "(id>>3)&15")
    else: E.s(S_A, "(id>>4)&7"); E.s(S_C, "id&15")
    E.v(vL, "l*16"); E.v(vL + 1, "l*16 + 1024")
    E.s(85, "(256*a + 128*(wb&1) + 2*c + (wb>>1))*1280")
    E.s(86, "(4*(q&15) + 256*(q>>4) + 128*(wb&1))*642")
    E.s(87, "wb*(4*ROWP) + LB_X", ROWP=ROWP, LB_X=LB_X)
    k.wait(lg=0)
    srd(k, R_X, S_X, S_X + 1, 2048 * 1280)
    k.I("s_cmp_lt_u32 s%d, 2" % S_WB)
    k.I("s_cselect_b32 s88, s%d, s%d" % (S_WR, S_WI)); k.I("s_cselect_b32 s89, s%d, s%d" % (S_WR + 1, S_WI + 1))
    srd(k, R_WR, 88, 89, 2048 * 642)
    stamp_setup(k)
    stamp(k, 0)
    for part in range(2):
        if part: k.I("s_mov_b64 exec, 0x1ffff")
        for n in range(4):
            k.I("s_add_u32 m0, s87, %d" % (n * ROWP + part * 1024))
            k.I("s_add_u32 s88, s85, %d" % (n * 40960))
            k.I("buffer_load_dwordx4 v%d, %s, s88 offen lds" % (vL + part, R(R_X)))
    k.I("s_mov_b64 exec, -1")
    E.s(87, "wb*(2*SEGP) + LB_W", SEGP=SEGP, LB_W=LB_W)
    for part in range(3):
        if part == 2: k.I("s_mov_b32 exec_hi, 1")
        for n in range(2):
            k.I("s_add_u32 m0, s87, %d" % (n * SEGP + part * 1024))
            k.I("s_add_u32 s88, s86, %d" % (n * 41088 + part * 1024))
            k.I("buffer_load_dwordx4 v%d, %s, s88 offen lds" % (vL, R(R_WR)))
    k.I("s_mov_b64 exec, -1")
    k.I("s_barrier")
    srd(k, R_WS, S_WS, S_WS + 1, WS_END)
    srd(k, R_DBG, S_DBG, S_DBG + 1, 256)
    k.I("v_mov_b32 v%d, 16" % vBase)
    k.I("v_mov_b32 v%d, s%d" % (vMine, S_WAVE)); k.I("v_lshlrev_b32 v%d, 2, v%d" % (vMine, vMine))
    k.I("s_cmp_eq_u32 s%d, 6" % S_WAVE); k.I("s_cselect_b32 s90, s%d, 1000" % S_Q)
    f = vt + 4; ang = vt + 5; st = vJ
    E.v(f, "(l&15) + 16*nu"); k.I("v_cvt_f32_u32 v%d, v%d" % (f, f))
    k.I("v_mul_f32 v%d, %s, v%d" % (st, f32(-1 / 40), f))
    E.v(ang, "((l>>4)&1)*4 + (l>>5)*16"); k.I("v_cvt_f32_u32 v%d, v%d" % (ang, ang))
    k.I("v_mul_f32 v%d, v%d, v%d" % (ang, ang, st))
    k.I("v_mov_b32 v%d, v%d" % (st + 1, ang))
    k.I("v_fma_f32 v%d, v%d, 4.0, v%d" % (st + 1, st, st + 1)); k.I("v_fma_f32 v%d, v%d, 4.0, v%d" % (st + 1, st, st + 1))
    trig_seq(k, ang, st, 4, tc, ts); trig_seq(k, st + 1, st, 4, tc + 4, ts + 4)
    for i in range(4):
        k.I("v_cvt_pk_bf16_f32 v%d, v%d, v%d" % (CA + i, tc + 2 * i, tc + 2 * i + 1))
        k.I("v_cvt_pk_bf16_f32 v%d, v%d, v%d" % (SA + i, ts + 2 * i, ts + 2 * i + 1))
    E.v(ang, "((l>>4)&1)*4 + 32"); k.I("v_cvt_f32_u32 v%d, v%d" % (ang, ang))
    k.I("v_mul_f32 v%d, v%d, v%d" % (ang, ang, st))
    trig_seq(k, ang, st, 4, tc, ts)
    for i in range(4): k.I("v_mov_b32 v%d, 0" % (CB + i)); k.I("v_mov_b32 v%d, 0" % (SB + i))
    k.I("s_mov_b64 exec, 0xffffffff")
    for i in range(2):
        k.I("v_cvt_pk_bf16_f32 v%d, v%d, v%d" % (CB + 2 + i, tc + 2 * i, tc + 2 * i + 1))
        k.I("v_cvt_pk_bf16_f32 v%d, v%d, v%d" % (SB + 2 + i, ts + 2 * i, ts + 2 * i + 1))
    k.I("s_mov_b64 exec, -1")
    k.I("v_mul_f32 v%d, %s, v%d" % (st, f32(-1 / 640), f))
    E.v(ang, "(l>>4)*4"); k.I("v_cvt_f32_u32 v%d, v%d" % (st + 2, ang))
    k.I("v_mul_f32 v%d, v%d, v%d" % (ang, st + 2, st))
    trig_seq(k, ang, st, 4, TWC, TWS)
    E.v(f, "l&15"); k.I("v_cvt_f32_u32 v%d, v%d" % (f, f)); k.I("v_mul_f32 v%d, %s, v%d" % (st, f32(1 / 16), f))
    k.I("v_mul_f32 v%d, v%d, v%d" % (ang, st + 2, st))
    trig_seq(k, ang, st, 4, tc, ts)
    for i in range(2):
        k.I("v_cvt_pk_bf16_f32 v%d, v%d, v%d" % (AR + i, tc + 2 * i, tc + 2 * i + 1))
        k.I("v_cvt_pk_bf16_f32 v%d, v%d, v%d" % (AR + 2 + i, ts + 2 * i, ts + 2 * i + 1))
    E.v(f, "((l&8)<<12) + ((l&8)<<28)")
    for i in range(2):
        k.I("v_xor_b32 v%d, 0x80008000, v%d" % (AI + i, AR + 2 + i)); k.I("v_xor_b32 v%d, v%d, v%d" % (AI + i, AI + i, f))
        k.I("v_xor_b32 v%d, v%d, v%d" % (AI + 2 + i, AR + i, f))
    E.v(f, "(l&15) + 16*nu")
    for r in range(4):
        E.v(ang, "j1 + 160*(l>>4) + 40*r", j1='v%d' % f, r=r)
        k.I("v_sub_u32 v%d, 640, v%d" % (tc, ang))
        k.I("v_cmp_gt_u32 vcc, 320, v%d" % ang); k.I("v_cndmask_b32 v%d, v%d, v%d, vcc" % (ang, tc, ang))
        E.v(vJ + r, "j*64 + (b*32 + LB_T)", j='v%d' % ang, LB_T=LB_T)
        k.I("v_cmp_lt_u32 s[92:93], 20, v%d" % f)
        k.I("v_cmp_eq_u32 s[94:95], 20, v%d" % f)
        k.I("v_cmp_eq_u32 s[98:99], 0, v%d" % f)
        k.I("v_cmp_ne_u32 vcc, 320, v%d" % ang)
        k.I("s_and_b64 s[98:99], s[98:99], vcc"); k.I("s_or_b64 s[94:95], s[94:95], s[98:99]")
        k.I("s_mov_b32 s94, 0"); k.I("s_nor_b64 s[%d:%d], s[92:93], s[94:95]" % (MSK[r], MSK[r] + 1))
    E.v(vTR, "(((l>>4)&1)*4 + ((l>>2)&3) + (l>>5)*16)*32 + (l&3)*8 + (b*(8*ROWP) + LB_X)", ROWP=ROWP, LB_X=LB_X)
    E.v(vTK, "(((l>>4)&1)*4 + ((l>>2)&3))*32 + (l&3)*8 + (b*(8*ROWP) + (LB_X + 1024))", ROWP=ROWP, LB_X=LB_X)
    E.s(85, "(a>>2)*4096 + ((c>>1)&1)*2048 + (16*(a&3) + 4*(c>>2) + 2*(c&1))*32 + WS_X1", WS_X1=WS_X1)
    stamp(k, 1)
    k.I("s_waitcnt vmcnt(0)"); k.vm = []
    S.publish(1); S.issue()
    lw = k.label()
    k.I("s_cmp_ge_u32 s90, 80"); k.I("s_cbranch_scc1 %s" % lw)
    sv = k.save()
    srd(k, R_WO, S_WO, S_WO + 1, 640 * 1280)
    E.s(91, "(q//20)*204800 + (q%20)*64")
    E.v(vW1, "(l>>4)*1280 + (l&15)*4 + o", o='s91'); E.v(vW4, "(l>>4)*5120 + (l&15)*4 + o", o='s91')
    for dw in range(20):
        qq, pos = divmod(dw, 10); h, kind = WOF_DW[pos]
        bb = (4 * qq + h) * 20
        rows = {'a': (bb, bb + 1), 'b': (bb + 2, bb + 3), 'x': (bb + 16, bb + 36)}[kind]
        for hf in range(2):
            k.I("s_mov_b32 s74, %d" % (rows[hf] * 1280))
            k.I("buffer_load_dword v%d, v%d, %s, s74 offen" % (WOR + 2 * dw + hf, vW1 if kind == 'x' else vW4, R(R_WO)))
    k.settle(); k.restore(sv); k.hist = []
    k.place(lw)
    S.check(1)
    stamp(k, 2)
    af = lambda i: AF + 6 * i
    for i in range(8):
        k.I("ds_read_b64_tr_b16 %s, v%d offset:%d" % (vr(af(i), 2), vTR, i * ROWP))
        k.I("ds_read_b64_tr_b16 %s, v%d offset:%d" % (vr(af(i) + 2, 2), vTR, i * ROWP + 256))
        k.I("ds_read_b64_tr_b16 %s, v%d offset:%d" % (vr(af(i) + 4, 2), vTK, i * ROWP))
    tr = lambda i: T + 8 * i
    def m1(i):
        k.I("v_mfma_f32_16x16x32_bf16 %s, %s, %s, 0" % (vr(tr(i), 4), vr(af(i), 4), vr(CA, 4)))
        k.I("v_mfma_f32_16x16x32_bf16 %s, %s, %s, 0" % (vr(tr(i) + 4, 4), vr(af(i), 4), vr(SA, 4)))
        k.I("v_mfma_f32_16x16x32_bf16 %s, %s, %s, %s" % (vr(tr(i), 4), vr(af(i) + 2, 4), vr(CB, 4), vr(tr(i), 4)))
        k.I("v_mfma_f32_16x16x32_bf16 %s, %s, %s, %s" % (vr(tr(i) + 4, 4), vr(af(i) + 2, 4), vr(SB, 4), vr(tr(i) + 4, 4)))
    def tw(i):
        t = tr(i); p = PB + 4 * (i & 1)
        for h in (0, 2):
            k.I("v_pk_mul_f32 %s, %s, %s" % (vr(tc + h, 2), vr(t + 4 + h, 2), vr(TWS + h, 2)))
            k.I("v_pk_mul_f32 %s, %s, %s" % (vr(ts + h, 2), vr(t + h, 2), vr(TWS + h, 2)))
        for h in (0, 2):
            k.I("v_pk_fma_f32 %s, %s, %s, %s neg_lo:[0,0,1] neg_hi:[0,0,1]" % (vr(tc + h, 2), vr(t + h, 2), vr(TWC + h, 2), vr(tc + h, 2)))
            k.I("v_pk_fma_f32 %s, %s, %s, %s" % (vr(ts + h, 2), vr(t + 4 + h, 2), vr(TWC + h, 2), vr(ts + h, 2)))
        for h in (0, 2):
            k.I("v_cvt_pk_bf16_f32 v%d, v%d, v%d" % (p + h // 2, tc + h, tc + h + 1))
            k.I("v_cvt_pk_bf16_f32 v%d, v%d, v%d" % (p + 2 + h // 2, ts + h, ts + h + 1))
    def m2(i):
        t = tr(i); p = PB + 4 * (i & 1)
        k.I("v_mfma_f32_16x16x32_bf16 %s, %s, %s, 0" % (vr(t, 4), vr(AR, 4), vr(p, 4)))
        k.I("v_mfma_f32_16x16x32_bf16 %s, %s, %s, 0" % (vr(t + 4, 4), vr(AI, 4), vr(p, 4)))
    def pack(ip):
        for r in range(4):
            for c in range(2):
                k.I("v_cvt_pk_bf16_f32 v%d, v%d, v%d" % (REC + 8 * r + 4 * c + ip, tr(2 * ip) + 4 * c + r, tr(2 * ip + 1) + 4 * c + r))
    m1(0); m1(1); m1(2)
    for i in range(8):
        tw(i)
        if i + 3 < 8: m1(i + 3)
        m2(i)
        if i >= 3 and i % 2 == 1: pack((i - 3) // 2)
    pack(3)
    for r in range(4):
        k.I("s_mov_b64 exec, s[%d:%d]" % (MSK[r], MSK[r] + 1))
        for c in range(2):
            k.I("ds_write_b128 v%d, %s offset:%d" % (vJ + r, vr(REC + 8 * r + 4 * c, 4), 16 * c))
    k.I("s_mov_b64 exec, -1")
    S.publish(2)
    stamp(k, 3)
    vR = vTR; vS_ = vTK; vT = vJ
    E.v(vR, "(l&3)*642 + (l>>2)*2 + (wb*32 + LB_W)", LB_W=LB_W)
    E.v(vS_, "((l>>2) + 16*wb)*8192 + (l&3)*16")
    E.v(vT, "l*16 + (wb*1024 + LB_T)", LB_T=LB_T)
    E.s(87, "((q>>2)&3)*2048 + ((q>>4)&1)*1024 + (16*(q>>5) + 4*(q&3))*16 + WS_WT", WS_WT=WS_WT)
    init_issue(k, vI, vI + 1)
    def wt_rd(it):
        for ii in range(4):
            for arr in range(2):
                k.I("ds_read_u16 v%d, v%d offset:%d" % (T + 8 * it + 2 * ii + arr, vR, arr * 4 * SEGP + ii * SEGP + it * 128))
    def wt_st(it):
        for ii in range(4):
            k.I("v_lshl_or_b32 v%d, v%d, 16, v%d" % (AF + 4 * it + ii, T + 8 * it + 2 * ii + 1, T + 8 * it + 2 * ii))
        k.I("s_add_u32 s86, s87, %d" % (it * 64 * 8192))
        k.I("buffer_store_dwordx4 %s, v%d, %s, s86 offen sc1" % (vr(AF + 4 * it, 4), vS_, R(R_WS)))
    XB = AF + 24
    def x_rd(it): k.I("ds_read_b128 %s, v%d offset:%d" % (vr(XB + 4 * it, 4), vT, it * 4096))
    def x_st(it):
        k.I("s_add_u32 s86, s85, %d" % (it * 64 * 8192))
        k.I("buffer_store_dwordx4 %s, v%d, %s, s86 offen sc1" % (vr(XB + 4 * it, 4), vS_, R(R_WS)))
    wt_rd(0); wt_rd(1)
    S.issue(); S.check(2)
    for it in range(6): x_rd(it)
    for it in range(5): x_st(it)
    for it in range(5):
        if it + 2 < 6: wt_rd(it + 2)
        wt_st(it)
    k.I("s_cmp_eq_u32 s%d, 4" % S_WAVE); k.I("s_cselect_b64 exec, 15, 0")
    x_st(5); k.vm.pop()
    wt_st(5); k.vm.pop()
    k.I("s_mov_b64 exec, -1")
    stamp(k, 4)
    keep = [WOR + i for i in range(40)]
    V2 = Alloc(1, WOR)
    V3 = Alloc(WOR + 40, vMine)
    class VV:
        def get(self, n=1, align=None):
            try: return V2.get(n, align)
            except AssertionError:
                V2.p = V2.end; return V3.get(n, align)
    k.wait(lg=0)
    C = ColRegs(VV())
    LX = [L_F, L_F + 20480]; LU = [L_F + 8192, L_F + 28672]
    col_addr(k, C, S_WB)
    col_consts(k, C, S_WB, LX[0], LU[0])
    E = Ex(k, [C.vt + i for i in range(4)], ST, E.env)
    S_J = [81, 82, 83]
    E.s(S_J[0], "(q>>5)*80 + (q&31)"); E.s(S_J[1], "j + 32", j='s%d' % S_J[0]); E.s(S_J[2], "j + 64", j='s%d' % S_J[0])
    k.I("s_cmp_eq_u32 s%d, 16" % S_Q); k.I("s_cselect_b32 s%d, 320, s%d" % (S_J[2], S_J[2]))
    k.I("s_cselect_b32 s84, 0, s%d" % S_Q); k.I("s_and_b32 s84, s84, 16")
    E.s(88, "q*64 + (WS_FL + FX*64)", WS_FL=WS_FL, FX=FX)
    init_check(k, vI, vI + 1, 97)
    stamp(k, 5)
    clean(k)
    arrive(k, W_FX, 3, 88, C.vt, 96)
    stamp(k, 6)
    l6 = k.label()
    k.I("s_cmp_ge_u32 s90, 80"); k.I("s_cbranch_scc1 %s" % l6)
    sv = k.save()
    TW = C.XF; TW2 = C.D
    k.I("s_mov_b32 s74, 0x05040100"); k.I("s_mov_b32 s75, 0x07060302")
    for dw in range(20):
        k.I("v_perm_b32 v%d, v%d, v%d, s74" % (TW + dw, WOR + 2 * dw + 1, WOR + 2 * dw))
        k.I("v_perm_b32 v%d, v%d, v%d, s75" % (WOR + dw, WOR + 2 * dw + 1, WOR + 2 * dw))
    E.v(C.vt + 5, "2*(q%20) + ((l>>3)&1)")
    E2 = Ex(k, [C.vt + i for i in range(4)], ST, E.env, rng=128)
    E2.v(C.vt + 4, "(tt//5)*102400 + (tt%5)*5120 + ((l>>4)*16 + (l&7)*2)*16 + ((q//20)*25600 + WS_WOF)", tt='v%d' % (C.vt + 5), WS_WOF=WS_WOF)
    k.I("s_mov_b32 s74, 4096")
    for c in range(5):
        for o in range(2):
            k.I("buffer_store_dwordx4 %s, v%d, %s, %s offen offset:%d sc1" % (vr((TW, WOR)[o] + 4 * c, 4), C.vt + 4, R(R_WS), "s74" if c == 4 else "0", (1024 * c) % 4096 + 16 * o))
    E.s(88, "q*64 + (WS_FL + FW*64)", WS_FL=WS_FL, FW=FW)
    clean(k)
    set_flag(k, 88, C.vt)
    k.settle(); k.restore(sv); k.hist = []
    k.place(l6)
    E.v(vI + 1, "(l&31)*64"); E.s(88, "wb*2048 + (WS_FL + FX*64)", WS_FL=WS_FL, FX=FX)
    poll(k, vI, vI + 1, R_WS, "s88", 97)
    S.barrier(3)
    stamp(k, 7)
    col_loads(k, C, S_WB, S_J[0], LX[0], 0)
    col_loads(k, C, S_WB, S_J[1], LX[1], 1)
    col_compute(k, C, S_J[0], 0, lambda: S.barrier(4), lambda: S.barrier(5), lambda: None)
    stamp(k, 8)
    l3 = k.label(); le = k.label()
    k.I("s_cmp_lg_u32 s84, 0"); k.I("s_cbranch_scc1 %s" % l3)
    sv = k.save()
    col_loads(k, C, S_WB, S_J[2], LX[0], 0)
    col_compute(k, C, S_J[1], 1, lambda: S.barrier(6), lambda: S.barrier(7), lambda: None)
    stamp(k, 9)
    col_compute(k, C, S_J[2], 0, lambda: S.barrier(8), lambda: S.barrier(9), lambda: None)
    k.settle(); k.I("s_branch %s" % le)
    k.restore(sv); k.place(l3)
    col_compute(k, C, S_J[1], 1, lambda: S.barrier(6), lambda: S.barrier(7), lambda: None)
    stamp(k, 9)
    k.settle()
    k.place(le)
    stamp(k, 10)
    E.s(88, "q*64 + (WS_FL + FY*64)", WS_FL=WS_FL, FY=FY)
    S.publish(10)
    clean(k)
    arrive(k, W_FY, 3, 88, C.vt, 96)
    S.issue(); S.check(10)
    stamp(k, 11)
    E.s(S_RB, "2*rb", rb='s%d' % S_RB)
    k.I("s_setprio 0")
    clean(k)
    k.I("s_branch FINAL_D")

def kv_zero(k, E, t):
    for i in range(4): k.I("v_mov_b32 v%d, 0" % (t + 4 + i))
    k.I("v_lshlrev_b32 v%d, 4, v0" % (t + 2)); k.I("v_lshlrev_b32 v%d, 6, v0" % (t + 3))
    k.I("s_mov_b64 exec, s[96:97]")
    E.s(88, "qd*5120 + WS_FL", WS_FL=WS_FL); E.s(89, "qd*5120 + (WS_FL + 4096)", WS_FL=WS_FL)
    k.I("buffer_store_dword v%d, v%d, %s, s88 offen sc0 sc1" % (t + 4, t + 3, R(R_WS)), tag="Z")
    k.I("s_and_b64 exec, s[96:97], 0xffff")
    k.I("buffer_store_dword v%d, v%d, %s, s89 offen sc0 sc1" % (t + 4, t + 3, R(R_WS)), tag="Z")
    k.I("s_mov_b64 exec, s[96:97]")
    for h in range(2):
        E.s(88, "qd*7680 + (WS_KV + 4096*h)", WS_KV=WS_KV, h=h)
        for i in range(4):
            if h == 1 and i == 3: k.I("s_mov_b32 exec_hi, 0")
            k.I("buffer_store_dwordx4 %s, v%d, %s, s88 offen offset:%d sc0 sc1" % (vr(t + 4, 4), t + 2, R(R_WS), 1024 * i), tag="Z")
    k.I("s_mov_b64 exec, -1")
def kv_flag(k, E, t):
    E.s(88, "qd*4 + 128")
    k.I("v_mov_b32 v%d, 1" % (t + 1)); k.I("v_mov_b32 v%d, 0" % t)
    k.I("s_and_b64 exec, s[96:97], 1")
    k.I("buffer_store_dword v%d, v%d, %s, s88 offen sc0 sc1" % (t + 1, t, R(R_DBG)))
    k.vm.pop()
    k.I("s_mov_b64 exec, -1")

class ColRegs:
    def __init__(self, V):
        self.C64 = V.get(8, 4); self.S64 = V.get(8, 4); self.N64 = V.get(8, 4)
        self.C32 = V.get(8, 4); self.S32 = V.get(8, 4); self.N32 = V.get(8, 4)
        self.TC = V.get(8, 2); self.TS = V.get(8, 2)
        self.XF = V.get(32, 4)
        self.D = V.get(16, 4); self.P = V.get(8, 4); self.WW = [V.get(8, 4), V.get(8, 4)]; self.WR = V.get(8, 2); self.WI = V.get(8, 2)
        self.t1 = V.get(8, 2); self.t2 = V.get(8, 2)
        self.vX = V.get(1); self.vXR = V.get(1); self.vW = V.get(1); self.vUW = V.get(1); self.vUR = V.get(1); self.vY = V.get(1)
        self.vt = V.get(6, 2)

def col_consts(k, C, sw, LX, LU):
    vt = C.vt
    E = Ex(k, [vt + i for i in range(3)], ST, {'l': 'v0', 'w': 's%d' % sw})
    f = vt + 3; ang = vt + 4; st = vt + 5; tc = C.t1; ts = C.t2; g8 = C.P
    def pack(cd, sd, nd):
        for i in range(4):
            k.I("v_cvt_pk_bf16_f32 v%d, v%d, v%d" % (cd + i, tc + 2 * i, tc + 2 * i + 1))
            k.I("v_cvt_pk_bf16_f32 v%d, v%d, v%d" % (sd + i, ts + 2 * i, ts + 2 * i + 1))
        for i in range(4): k.I("v_xor_b32 v%d, 0x80008000, v%d" % (nd + i, sd + i))
    E.v(g8, "(l>>4)*8"); k.I("v_cvt_f32_u32 v%d, v%d" % (g8, g8))
    E.v(f, "(l&15) + 16*w"); k.I("v_cvt_f32_u32 v%d, v%d" % (f, f))
    k.I("v_mul_f32 v%d, %s, v%d" % (st, f32(1 / 64), f))
    for u in range(2):
        k.I("v_mul_f32 v%d, v%d, v%d" % (ang, g8, st))
        if u: k.I("v_fma_f32 v%d, v%d, 0.5, v%d" % (ang, f, ang))
        trig_seq(k, ang, st, 8, tc, ts)
        pack(C.C64 + 4 * u, C.S64 + 4 * u, C.N64 + 4 * u)
    k.I("v_mul_f32 v%d, %s, v%d" % (st, f32(1 / 2048), f))
    k.I("v_mul_f32 v%d, v%d, v%d" % (ang, g8, st))
    trig_seq(k, ang, st, 8, C.TC, C.TS)
    for tau in range(2):
        E.v(f, "((l>>2)&3)*8 + (l&3) + 4*tau", tau=tau); k.I("v_cvt_f32_u32 v%d, v%d" % (f, f))
        k.I("v_mul_f32 v%d, %s, v%d" % (st, f32(1 / 32), f))
        k.I("v_mul_f32 v%d, v%d, v%d" % (ang, g8, st))
        trig_seq(k, ang, st, 8, tc, ts)
        pack(C.C32 + 4 * tau, C.S32 + 4 * tau, C.N32 + 4 * tau)
    E.v(C.vXR, "(l>>5)*1024 + (l&31)*16 + LX", LX=LX)
    E.v(C.vUW, "(16*w + (l&3) + ((l&4)<<1) + ((l&8)>>1))*96 + (l>>4)*8 + LU", LU=LU)
    E.v(C.vUR, "((l>>5)*16 + ((l>>4)&1)*4 + ((l>>2)&3))*96 + (l&3)*8 + LU", LU=LU)
    E.v(C.vY, "(8*w + ((l>>1)&7))*81920 + (l&1)*64 + (l>>4)*16")

def col_addr(k, C, sw):
    E = Ex(k, [C.vt + i for i in range(3)], ST, {'l': 'v0', 'w': 's%d' % sw})
    E.v(C.vX, "(l&31)*32 + (l>>5)*16 + w*2048")
    E.v(C.vW, "l*16 + w*2048")

def col_loads(k, C, sw, sj, LX, buf, sc=" sc1"):
    E = Ex(k, [], ST, {'w': 's%d' % sw, 'j': 's%d' % sj})
    E.s(93, "j*8192 + WS_X1", WS_X1=WS_X1); E.s(91, "j*8192 + WS_WT", WS_WT=WS_WT)
    E.s(92, "w*2048 + LX", LX=LX)
    k.I("s_mov_b32 m0, s92")
    k.I("buffer_load_dwordx4 v%d, %s, s93 offen%s lds" % (C.vX, R(R_WS), sc), tag="CX%d" % buf)
    k.I("s_add_u32 m0, s92, 1024"); k.I("s_add_u32 s93, s93, 1024")
    k.I("buffer_load_dwordx4 v%d, %s, s93 offen%s lds" % (C.vX, R(R_WS), sc), tag="CX%d" % buf)
    k.I("buffer_load_dwordx4 %s, v%d, %s, s91 offen%s" % (vr(C.WW[buf], 4), C.vW, R(R_WS), sc))
    k.I("buffer_load_dwordx4 %s, v%d, %s, s91 offen offset:1024%s" % (vr(C.WW[buf] + 4, 4), C.vW, R(R_WS), sc))

def cmul(k, C, cr, ci, conj):
    D = C.D; t1 = C.t1; t2 = C.t2
    for h in range(0, 8, 2):
        k.I("v_pk_mul_f32 %s, %s, %s" % (vr(t1 + h, 2), vr(D + 8 + h, 2), vr(ci + h, 2)))
        k.I("v_pk_mul_f32 %s, %s, %s" % (vr(t2 + h, 2), vr(D + h, 2), vr(ci + h, 2)))
    ng = " neg_lo:[0,0,1] neg_hi:[0,0,1]"
    for h in range(0, 8, 2):
        k.I("v_pk_fma_f32 %s, %s, %s, %s%s" % (vr(t1 + h, 2), vr(D + h, 2), vr(cr + h, 2), vr(t1 + h, 2), "" if conj else ng))
        k.I("v_pk_fma_f32 %s, %s, %s, %s%s" % (vr(t2 + h, 2), vr(D + 8 + h, 2), vr(cr + h, 2), vr(t2 + h, 2), ng if conj else ""))
    for h in range(0, 8, 2):
        k.I("v_cvt_pk_bf16_f32 v%d, v%d, v%d" % (C.P + h // 2, t1 + h, t1 + h + 1))
        k.I("v_cvt_pk_bf16_f32 v%d, v%d, v%d" % (C.P + 4 + h // 2, t2 + h, t2 + h + 1))

def mf(k, d, a, b, c): k.I("v_mfma_f32_16x16x32_bf16 %s, %s, %s, %s" % (vr(d, 4), vr(a, 4), vr(b, 4), "0" if c is None else vr(c, 4)))

def col_compute(k, C, sj, buf, bar1, bar2, mid, sc=" sc1"):
    D = C.D; XF = C.XF; P = C.P; BO = buf * 20480; WW = C.WW[buf]
    xf = lambda u, t, c: XF + 4 * ((u * 2 + t) * 2 + c)
    k.wait_tag("CX%d" % buf)
    bar1()
    for u in range(2):
        for t in range(2):
            for c in range(2):
                k.I("ds_read_b128 %s, v%d offset:%d" % (vr(xf(u, t, c), 4), C.vXR, BO + (u * 2 + t) * 2048 + c * 512))
    for i in range(8):
        k.I("v_lshlrev_b32 v%d, 16, v%d" % (C.WR + i, WW + i)); k.I("v_and_b32 v%d, 0xffff0000, v%d" % (C.WI + i, WW + i))
    for u in range(2):
        for t in range(2):
            mf(k, D + 4 * t, xf(u, t, 0), C.C64 + 4 * u, D + 4 * t if u else None)
            mf(k, D + 8 + 4 * t, xf(u, t, 1), C.C64 + 4 * u, D + 8 + 4 * t if u else None)
        for t in range(2):
            mf(k, D + 4 * t, xf(u, t, 1), C.S64 + 4 * u, D + 4 * t)
            mf(k, D + 8 + 4 * t, xf(u, t, 0), C.N64 + 4 * u, D + 8 + 4 * t)
    cmul(k, C, C.TC, C.TS, True)
    for t in range(2):
        mf(k, D + 4 * t, C.C32 + 4 * t, P, None); mf(k, D + 8 + 4 * t, C.C32 + 4 * t, P + 4, None)
    for t in range(2):
        mf(k, D + 4 * t, C.S32 + 4 * t, P + 4, D + 4 * t); mf(k, D + 8 + 4 * t, C.N32 + 4 * t, P, D + 8 + 4 * t)
    cmul(k, C, C.WR, C.WI, False)
    for t in range(2):
        mf(k, D + 4 * t, C.C32 + 4 * t, P, None); mf(k, D + 8 + 4 * t, C.C32 + 4 * t, P + 4, None)
    for t in range(2):
        mf(k, D + 4 * t, C.N32 + 4 * t, P + 4, D + 4 * t); mf(k, D + 8 + 4 * t, C.S32 + 4 * t, P, D + 8 + 4 * t)
    cmul(k, C, C.TC, C.TS, False)
    k.I("v_add_u32 v%d, %d, v%d" % (C.vt + 1, BO, C.vUW))
    k.I("ds_write2_b64 v%d, %s, %s offset0:0 offset1:4" % (C.vt + 1, vr(P, 2), vr(P + 2, 2)))
    k.I("v_add_u32 v%d, %d, v%d" % (C.vt, 6144 + BO, C.vUW))
    k.I("ds_write2_b64 v%d, %s, %s offset0:0 offset1:4" % (C.vt, vr(P + 4, 2), vr(P + 6, 2)))
    k.wait(lg=0)
    bar2()
    for u in range(2):
        for t in range(2):
            for c in range(2):
                for jj in range(2):
                    k.I("ds_read_b64_tr_b16 %s, v%d offset:%d" % (vr(xf(u, t, c) + 2 * jj, 2), C.vUR, BO + c * 6144 + (32 * u + 8 * jj) * 96 + 32 * t))
    E = Ex(k, [], ST, {'j': 's%d' % sj})
    E.s(92, "j*256 + WS_Y", WS_Y=WS_Y)
    k.I("s_cmp_eq_u32 s%d, 320" % sj); k.I("s_cselect_b32 s92, 0x%x, s92" % (WS_Y + 128))
    E.s(91, "j % 320")
    for u in range(2):
        for t in range(2):
            mf(k, D + 4 * t, xf(u, t, 0), C.C64 + 4 * u, D + 4 * t if u else None)
            mf(k, D + 8 + 4 * t, xf(u, t, 1), C.C64 + 4 * u, D + 8 + 4 * t if u else None)
        for t in range(2):
            mf(k, D + 4 * t, xf(u, t, 1), C.N64 + 4 * u, D + 4 * t)
            mf(k, D + 8 + 4 * t, xf(u, t, 0), C.S64 + 4 * u, D + 8 + 4 * t)
    for h in range(4): k.I("v_cvt_pk_bf16_f32 v%d, v%d, v%d" % (P + h, D + 2 * h, D + 2 * h + 1))
    k.I("buffer_store_dwordx4 %s, v%d, %s, s92 offen%s" % (vr(P, 4), C.vY, R(R_WS), sc))
    for h in range(4): k.I("v_cvt_pk_bf16_f32 v%d, v%d, v%d" % (P + 4 + h, D + 8 + 2 * h, D + 8 + 2 * h + 1))
    k.I("s_cmp_eq_u32 s91, 0"); k.I("s_cselect_b32 s92, 0x%x, s92" % OOB)
    k.I("buffer_store_dwordx4 %s, v%d, %s, s92 offen offset:128%s" % (vr(P + 4, 4), C.vY, R(R_WS), sc))

def sel_frags(k, SEL, t):
    k.I("v_and_b32 v%d, 1, v0" % t); k.I("v_lshlrev_b32 v%d, 4, v%d" % (t, t))
    k.I("v_lshlrev_b32 v%d, v%d, 0x3f80" % (t + 1, t)) if False else None
    k.I("v_mov_b32 v%d, 0x3f80" % (t + 1)); k.I("v_lshlrev_b32 v%d, v%d, v%d" % (t + 1, t, t + 1))
    for i in range(16): k.I("v_mov_b32 v%d, 0" % (SEL + i))
    for q in range(4):
        for hf in range(2):
            m = 0x0003000300030003 << (4 * q + 2 * hf)
            k.I("s_mov_b32 exec_lo, 0x%x" % (m & 0xffffffff)); k.I("s_mov_b32 exec_hi, 0x%x" % (m >> 32))
            k.I("v_mov_b32 v%d, v%d" % (SEL + 4 * q + hf, t + 1)); k.I("v_mov_b32 v%d, v%d" % (SEL + 4 * q + 2 + hf, t + 1))
    k.I("s_mov_b64 exec, -1")

def k3_reduce(k, E, SEL, BUF, DD, tiles, vR, vO):
    k.wait(lg=0)
    k.I("s_barrier")
    stamp(k, 22)
    for n in range(len(tiles)):
        for q in range(4):
            k.I("ds_read2st64_b64 %s, v%d offset0:0 offset1:%d" % (vr(BUF + 16 * n + 4 * q, 4), vR + 4 * n + q, (L_F - L_RING) // 512))
    for n in range(len(tiles)):
        for q in range(4):
            mf(k, DD + 4 * n, SEL + 4 * q, BUF + 16 * n + 4 * q, DD + 4 * n if q else None)
    for n in range(len(tiles)):
        d = DD + 4 * n
        k.I("v_cvt_pk_bf16_f32 v%d, v%d, v%d" % (d, d, d + 1)); k.I("v_cvt_pk_bf16_f32 v%d, v%d, v%d" % (d + 1, d + 2, d + 3))
        k.I("buffer_store_dwordx2 %s, v%d, %s, s86 offen" % (vr(d, 2), vO + n, R(R_OUT)))
    fin(k, 23)

def red_addr(k, E, tiles, vR, vO, t):
    for n, tl in enumerate(tiles):
        E.v(vR + 4 * n, "(l>>4)*20480 + (l&15)*8 + ((%s)*512 + L_RING)" % tl, L_RING=L_RING)
        for q in range(1, 4): k.I("v_add_u32 v%d, %d, v%d" % (vR + 4 * n + q, q * 128, vR + 4 * n))
        E.v(t, "l + (%s)*64" % tl)
        E.v(vO + n, "(lam//20)*1120 + lam*8", lam='v%d' % t)
    E.s(86, "rb*81920 + ct*160")

def k3_attn(k):
    global STV
    V = Alloc(1, 256)
    vL = V.get(1); vG = V.get(4); vKV = V.get(1); vPW = V.get(1)
    PQ = V.get(80, 4); W = V.get(60, 4); KVF = V.get(64, 4); TMP = V.get(44, 4)
    STV = TMP + 40
    E = Ex(k, [TMP + i for i in range(4)], ST, {'l': 'v0', 'w': 's6', 'rb': 's4', 'ct': 's5'}, rng=1280)
    vF = TMP + 32; vFa = TMP + 33
    k.I("s_and_b32 s6, s%d, 3" % S_WAVE)
    stamp(k, 16)
    k.I("v_min_u32 v%d, 2, v0" % vFa); k.I("v_lshlrev_b32 v%d, 6, v%d" % (vFa, vFa))
    E.s(87, "(20*w + ((5*ct)>>1))*64 + (WS_FL + FW*64)", WS_FL=WS_FL, FW=FW)
    k.I("buffer_load_dword v%d, v%d, %s, s87 offen sc1" % (vF, vFa, R(R_WS)))
    vF2 = TMP + 34; vF2a = TMP + 35
    k.I("v_and_b32 v%d, 1, v0" % vF2a); k.I("v_lshlrev_b32 v%d, 6, v%d" % (vF2a, vF2a))
    E.s(88, "((rb>>1)*8 + 2*w)*64 + (WS_FL + FP*64)", WS_FL=WS_FL, FP=FP)
    k.I("buffer_load_dword v%d, v%d, %s, s88 offen sc1" % (vF2, vF2a, R(R_WS)))
    E.v(vL, "l*16")
    E.s(80, "w*15360 + WS_KV", WS_KV=WS_KV); E.s(81, "w*20480 + L_RING", L_RING=L_RING)
    E.s(82, "rb*81920 + w*5120 + WS_PQ", WS_PQ=WS_PQ)
    E.s(83, "(ct*4 + w)*25600 + WS_WOF", WS_WOF=WS_WOF)
    E.s(84, "((rb>>1)*8 + 2*w)*512 + (rb&1)*256 + WS_G", WS_G=WS_G)
    E.v(vKV, "(l&15)*4")
    srd(k, R_OUT, S_OUT, S_OUT + 1, 2048 * 1280)
    E.v(vPW, "(l&15)*160 + (l>>4)*8 + b", b='s81')
    for i in range(32, 64): k.I("v_mov_b32 v%d, 0" % (KVF + i))
    def ld5(dst, sreg, step):
        for c in range(5):
            if c == 4: k.I("s_add_u32 s%d, s%d, 4096" % (sreg, sreg))
            k.I("buffer_load_dwordx4 %s, v%d, %s, s%d offen offset:%d sc1" % (vr(dst + 4 * c, 4), vL, R(R_WS), sreg, (c * 1024) % 4096))
        k.I("s_add_u32 s%d, s%d, %d" % (sreg, sreg, step - 4096))
    poll(k, vF, vFa, R_WS, "s87", 89, first_issued=True)
    for nt in range(3): ld5(W + 20 * nt, 83, 5120)
    for i in range(10):
        k.I("s_add_u32 m0, s81, %d" % (i * 1024))
        k.I("buffer_load_dwordx4 v%d, %s, s83 offen sc1 lds" % (vL, R(R_WS)), tag="W34")
        if i < 9: k.I("s_add_u32 s83, s83, 1024")
    stamp(k, 17)
    E.v(vFa, "(l&31)*64"); E.s(87, "w*2048 + (WS_FL + FK*64)", WS_FL=WS_FL, FK=FK)
    poll(k, vF2, vF2a, R_WS, "s88", 89, first_issued=True)
    k.I("buffer_load_dword v%d, v%d, %s, s87 offen sc1" % (vF, vFa, R(R_WS)))
    for st in range(4): k.I("buffer_load_dword v%d, v%d, %s, s84 offen offset:%d sc1" % (vG + st, vKV, R(R_WS), 64 * st))
    for st in range(4): ld5(PQ + 20 * st, 82, 20480)
    k.I("v_lshlrev_b32 v%d, 2, v0" % vKV)
    EPSR = TMP + 40; RC = TMP + 36
    stamp(k, 18)
    poll(k, vF, vFa, R_WS, "s87", 89, first_issued=True)
    stamp(k, 19)
    RAW = [TMP, KVF]
    for qq in (1, 0):
        for i in range(30):
            p = 30 * qq + i
            if p % 16 == 0 or i == 0: k.I("s_add_u32 s85, s80, %d" % (p // 16 * 4096))
            k.I("buffer_load_dword v%d, v%d, %s, s85 offen offset:%d sc1" % (RAW[qq] + i, vKV, R(R_WS), (p % 16) * 256))
    if not OPT.stamps:
        k.I("v_mov_b32 v%d, 0x%x" % (EPSR, EPS)); k.I("v_mov_b32 v%d, 0" % (EPSR + 1)); k.I("v_mov_b32 v%d, 0x%x" % (EPSR + 2, EPS)); k.I("v_mov_b32 v%d, 0" % (EPSR + 3))
    E.v(vL, "l*16 + b", b='s81') if False else k.I("v_add_u32 v%d, s81, v%d" % (vL, vL))
    POS = [(0, 1, 2, 0), (1, 2, 0, 1), (1, 2, 3, 0), (2, 3, 1, 1)]
    def conv(dst, h, t, e):
        a_, b_, x_, hi = POS[h]
        k.I("v_cvt_pk_bf16_f32 v%d, v%d, v%d" % (dst + a_, t, t + 1)); k.I("v_cvt_pk_bf16_f32 v%d, v%d, v%d" % (dst + b_, t + 2, t + 3))
        k.I(("v_cvt_pk_bf16_f32 v%d, 0, v%d" if hi else "v_cvt_pk_bf16_f32 v%d, v%d, 0") % (dst + x_, e))
    for qq in (1, 0):
        t = RAW[qq]
        if qq == 0:
            for i in [3, 7, 8, 12] + list(range(16, 32)): k.I("v_mov_b32 v%d, 0" % (KVF + i))
        for h in range(4): conv(KVF + 32 * qq + 4 * h, h, t + 4 * h, t + 24 + h)
        k.I("s_mov_b32 exec_lo, 0x33333333"); k.I("s_mov_b32 exec_hi, 0x33333333")
        for p in range(2): conv(KVF + 32 * qq + 16 + 8 * p, 2 * p, t + 16 + 4 * p, t + 28 + p)
        k.I("s_mov_b32 exec_lo, 0xcccccccc"); k.I("s_mov_b32 exec_hi, 0xcccccccc")
        for p in range(2): conv(KVF + 32 * qq + 20 + 8 * p, 2 * p + 1, t + 16 + 4 * p, t + 28 + p)
        k.I("s_mov_b64 exec, -1")
    stamp(k, 20)
    if OPT.stamps:
        k.I("v_mov_b32 v%d, 0x%x" % (EPSR, EPS)); k.I("v_mov_b32 v%d, 0" % (EPSR + 1)); k.I("v_mov_b32 v%d, 0x%x" % (EPSR + 2, EPS)); k.I("v_mov_b32 v%d, 0" % (EPSR + 3))
    units = [(st, qq, p) for st in range(4) for qq in range(2) for p in range(2)]
    def s1m(n):
        st, qq, p = units[n]; b = TMP + 12 * (n % 3); base = PQ + 20 * st + 10 * qq
        for hh in range(2):
            h = 2 * p + hh
            mf(k, b + 4 * hh, KVF + 32 * qq + 4 * h, base + 2 * h, None)
            mf(k, b + 8, KVF + 32 * qq + 16 + 4 * h, base + 2 * h, b + 8 if hh else EPSR)
    def s1v(n):
        st, qq, p = units[n]; b = TMP + 12 * (n % 3); base = PQ + 20 * st + 10 * qq + 5 * p; rc = RC + 2 * (n % 2)
        k.I("v_rcp_f32 v%d, v%d" % (rc, b + 8)); k.I("v_rcp_f32 v%d, v%d" % (rc + 1, b + 10))
        k.I("v_mul_f32 v%d, v%d, v%d" % (rc, vG + st, rc)); k.I("v_mul_f32 v%d, v%d, v%d" % (rc + 1, vG + st, rc + 1))
        for hf in (0, 2):
            k.I("v_pk_mul_f32 %s, %s, %s op_sel:[0,0] op_sel_hi:[1,0]" % (vr(b + hf, 2), vr(b + hf, 2), vr(rc, 2)))
            k.I("v_pk_mul_f32 %s, %s, %s op_sel:[0,1] op_sel_hi:[1,1]" % (vr(b + 4 + hf, 2), vr(b + 4 + hf, 2), vr(rc, 2)))
        k.I("v_mul_f32 v%d, v%d, v%d" % (b + 9, b + 9, rc)); k.I("v_mul_f32 v%d, v%d, v%d" % (b + 11, b + 11, rc + 1))
        k.I("v_cvt_pk_bf16_f32 v%d, v%d, v%d" % (base, b, b + 1)); k.I("v_cvt_pk_bf16_f32 v%d, v%d, v%d" % (base + 1, b + 2, b + 3))
        k.I("v_cvt_pk_bf16_f32 v%d, v%d, v%d" % (base + 3, b + 4, b + 5)); k.I("v_cvt_pk_bf16_f32 v%d, v%d, v%d" % (base + 4, b + 6, b + 7))
        k.I("v_cvt_pk_bf16_f32 v%d, v%d, v%d" % (base + 2, b + 9, b + 11))
    s1m(0); s1m(1)
    for n in range(16):
        if n + 2 < 16: s1m(n + 2)
        s1v(n)
    k.wait_tag("W34")
    for i in range(10): k.I("ds_read_b128 %s, v%d offset:%d" % (vr(KVF + 4 * i, 4), vL, i * 1024))
    STV = TMP + 32
    stamp(k, 21)
    WF = [W, W + 20, W + 40, KVF, KVF + 20]
    ACC = [TMP, KVF + 40]; SEL = TMP + 16; vR = KVF + 56; vO = TMP + 36; PK = TMP + 38
    E = Ex(k, [TMP + 32 + i for i in range(3)], ST, E.env, rng=1280)
    def flush(nt):
        a = ACC[nt % 2]
        for st in range(4):
            k.I("v_cvt_pk_bf16_f32 v%d, v%d, v%d" % (a + 4 * st, a + 4 * st, a + 4 * st + 1))
            k.I("v_cvt_pk_bf16_f32 v%d, v%d, v%d" % (a + 4 * st + 1, a + 4 * st + 2, a + 4 * st + 3))
            k.I("ds_write_b64 v%d, %s offset:%d" % (vPW, vr(a + 4 * st, 2), st * 2560 + nt * 32))
    tiles = ["w", "w + 4"]
    for nt in range(5):
        a = ACC[nt % 2]
        for c in range(5):
            for st in range(4): mf(k, a + 4 * st, WF[nt] + 4 * c, PQ + 20 * st + 4 * c, a + 4 * st if c else None)
            if c == 1 and nt > 0: flush(nt - 1)
            if c == 1 and nt == 0: sel_frags(k, SEL, TMP + 32)
            if c == 3 and nt == 0: red_addr(k, E, tiles, vR, vO, TMP + 35)
    flush(4)
    STV = TMP + 40
    stamp(k, 24)
    k3_reduce(k, E, SEL, PQ, PQ + 48, tiles, vR, vO)
    STV = 252

def k3_dft(k):
    V = Alloc(1, 252)
    YF = V.get(80, 4); ACC = [V.get(16, 4), V.get(16, 4)]; AFR = [V.get(4, 4), V.get(4, 4)]
    Z0 = V.get(8, 2); Z = V.get(8, 2); SG = V.get(8, 2); RHO = V.get(2, 2); T2 = V.get(8, 2)
    vG = V.get(4); vD = V.get(1); vY = V.get(4); vPW = V.get(1); vFX = V.get(1)
    SEL = V.get(16, 4); vR = V.get(12); vO = V.get(3); vt = V.get(8, 2); vF = V.get(2); vGa = V.get(1)
    E = Ex(k, [vt + i for i in range(4)], ST, {'l': 'v0', 'w': 's6', 'rb': 's4', 'ct': 's5'}, rng=1280)
    k.I("s_and_b32 s6, s%d, 3" % S_WAVE)
    stamp(k, 16)
    E.v(vF + 1, "(l&31)*64 + (w*2048 + FY*64)", FY=FY)
    E.s(87, "((rb>>1)*8 + w)*64 + FP*64", FP=FP)
    k.I("s_mov_b32 exec_lo, 0"); k.I("v_mov_b32 v%d, s87" % (vF + 1)); k.I("s_mov_b64 exec, -1")
    k.I("s_mov_b32 s87, 0x%x" % WS_FL)
    k.I("buffer_load_dword v%d, v%d, %s, s87 offen sc1" % (vF, vF + 1, R(R_WS)))
    E.v(vD, "(l>>3)*128 + (((l&7) ^ ((l>>4)<<1))<<4)")
    E.s(80, "rb*81920 + w*20480 + WS_Y", WS_Y=WS_Y); E.s(81, "w*20480 + L_F", L_F=L_F)
    E.s(84, "((rb>>1)*8 + w)*512 + (rb&1)*256 + WS_G", WS_G=WS_G)
    E.v(vGa, "(l&15)*4")
    srd(k, R_OUT, S_OUT, S_OUT + 1, 2048 * 1280)
    def consts():
        for st in range(4):
            E.v(vY + st, "((l>>5)*16 + ((l>>4)&1)*4 + ((l>>2)&3))*128 + ((st ^ (((l>>4)&1)*2 + ((l>>3)&1)))<<5) + (l&3)*8 + b", st=st, b='s81')
        E.v(vPW, "(l&15)*160 + (l>>4)*8 + b", b='s81')
        fd = vt + 4; fj = vt + 5; x = vt + 6; y = vt + 7
        E.v(fd, "(l&15) + 80*ct"); k.I("v_cvt_f32_u32 v%d, v%d" % (fd, fd))
        E.v(fj, "(l>>5)*8 + ((l>>4)&1)*2 + 80*w"); k.I("v_cvt_f32_u32 v%d, v%d" % (fj, fj))
        for a_, dj in enumerate((0, 1, 4, 5)):
            k.I("v_add_f32 v%d, %s, v%d" % (y, f32(float(dj)), fj))
            k.I("v_mul_f32 v%d, v%d, v%d" % (x, y, fd))
            k.I("v_mul_f32 v%d, %s, v%d" % (T2, f32(1 / 640), x)); k.I("v_floor_f32 v%d, v%d" % (T2, T2))
            k.I("v_mul_f32 v%d, %s, v%d" % (T2, f32(640.0), T2)); k.I("v_sub_f32 v%d, v%d, v%d" % (x, T2, x))
            k.I("v_mul_f32 v%d, %s, v%d" % (x, f32(1 / 640), x))
            k.I("v_cos_f32 v%d, v%d" % (Z0 + 2 * a_, x)); k.I("v_sin_f32 v%d, v%d" % (Z0 + 2 * a_ + 1, x))
            k.I("v_mul_f32 v%d, %s, v%d" % (y, f32(-1 / 40), y))
            k.I("v_cos_f32 v%d, v%d" % (SG + 2 * a_, y)); k.I("v_sin_f32 v%d, v%d" % (SG + 2 * a_ + 1, y))
        k.I("v_mul_f32 v%d, %s, v%d" % (x, f32(-1 / 40), fd))
        k.I("v_cos_f32 v%d, v%d" % (RHO, x)); k.I("v_sin_f32 v%d, v%d" % (RHO + 1, x))
        import math
        k.I("s_mov_b32 s82, %s" % f32(math.cos(2 * math.pi * 0.4))); k.I("s_mov_b32 s83, %s" % f32(-math.sin(2 * math.pi * 0.4)))
        E.v(vFX, "((l&1)<<31) + 0x3f003f00")
        k.I("s_cmp_eq_u32 s6, 0"); k.I("s_cselect_b32 s88, 0xffff, 0"); k.I("s_mov_b32 s89, 0")
        sel_frags(k, SEL, vt + 4)
        red_addr(k, E, tiles, vR, vO, vt + 4)
    tiles = ["w + 8", "w + 12", "w + 16"]
    if OPT.dfirst: consts()
    stamp(k, 17)
    poll(k, vF, vF + 1, R_WS, "s87", 90, first_issued=True)
    stamp(k, 18)
    for i in range(20):
        k.I("s_add_u32 m0, s81, %d" % (i * 1024))
        k.I("buffer_load_dwordx4 v%d, %s, s80 offen sc1 lds" % (vD, R(R_WS)), tag="Y%d" % (i // 4))
        if i < 19: k.I("s_add_u32 s80, s80, 1024")
    for st in range(4): k.I("buffer_load_dword v%d, v%d, %s, s84 offen offset:%d sc1" % (vG + st, vGa, R(R_WS), 64 * st))
    if not OPT.dfirst: consts()
    def rot(d, z, r):
        k.I("v_pk_mul_f32 %s, %s, %s op_sel:[0,0] op_sel_hi:[0,1]" % (vr(T2 + (d & 7), 2), vr(z, 2), r))
        k.I("v_pk_fma_f32 %s, %s, %s, %s op_sel:[1,1,0] op_sel_hi:[1,0,1] neg_lo:[1,0,0]" % (vr(d, 2), vr(z, 2), r, vr(T2 + (d & 7), 2)))
    stamp(k, 19)
    for kk in range(5):
        k.wait_tag("Y%d" % kk)
        for st in range(4):
            for jj in range(2):
                k.I("ds_read_b64_tr_b16 %s, v%d offset:%d" % (vr(YF + 16 * kk + 4 * st + 2 * jj, 2), vY + st, kk * 4096 + jj * 1024))
    for st in range(4):
        k.I("v_sub_f32 v%d, 1.0, v%d" % (vG + st, vG + st))
        k.I("v_mul_f32 v%d, %s, v%d" % (vG + st, f32(2.0 / (2048 * 640)), vG + st))
    stamp(k, 20)
    def gen(nt, kk):
        src = Z0 if kk == 0 else Z
        f = AFR[(nt * 5 + kk) % 2]
        for a_ in range(4): k.I("v_cvt_pk_bf16_f32 v%d, v%d, v%d" % (f + a_, src + 2 * a_, src + 2 * a_ + 1))
        if kk == 0: k.I("v_cndmask_b32 v%d, v%d, v%d, s[88:89]" % (f, f, vFX))
        if kk < 4:
            for a_ in range(4): rot(Z + 2 * a_, src + 2 * a_, vr(RHO, 2))
        elif nt < 4:
            for a_ in range(4): rot(Z0 + 2 * a_, Z0 + 2 * a_, vr(SG + 2 * a_, 2))
            rot(RHO, RHO, "s[82:83]")
    def flush(nt):
        a = ACC[nt % 2]
        for st in range(4):
            g = vG + st; gp = vr(g & ~1, 2); sel = "op_sel:[0,%d] op_sel_hi:[1,%d]" % (g & 1, g & 1)
            k.I("v_pk_mul_f32 %s, %s, %s %s" % (vr(a + 4 * st, 2), vr(a + 4 * st, 2), gp, sel))
            k.I("v_pk_mul_f32 %s, %s, %s %s" % (vr(a + 4 * st + 2, 2), vr(a + 4 * st + 2, 2), gp, sel))
            k.I("v_cvt_pk_bf16_f32 v%d, v%d, v%d" % (a + 4 * st, a + 4 * st, a + 4 * st + 1))
            k.I("v_cvt_pk_bf16_f32 v%d, v%d, v%d" % (a + 4 * st + 1, a + 4 * st + 2, a + 4 * st + 3))
            k.I("ds_write_b64 v%d, %s offset:%d" % (vPW, vr(a + 4 * st, 2), st * 2560 + nt * 32))
    gen(0, 0)
    for nt in range(5):
        a = ACC[nt % 2]
        for kk in range(5):
            f = AFR[(nt * 5 + kk) % 2]
            n = nt * 5 + kk + 1
            if n < 25: gen(n // 5, n % 5)
            for st in range(4): mf(k, a + 4 * st, f, YF + 16 * kk + 4 * st, a + 4 * st if kk else None)
            if kk == 1 and nt > 0: flush(nt - 1)
    flush(4)
    stamp(k, 24)
    k3_reduce(k, E, SEL, YF, ACC[0], tiles, vR, vO)

def kernels():
    return [("f_kernel", k1, 256, 512, 163840)]

def build(kernels):
    hdr = []
    for name, fn, grid, block, lds in kernels:
        hdr.append("; @launch kernel=%s grid=(%d,1,1) block=(%d,1,1) lds=%d" % (name, grid, block, lds))
    s = "\n".join(hdr) + "\n.amdgcn_target \"amdgcn-amd-amdhsa--gfx950\"\n.text\n"
    desc = ""
    nl = 0
    for i, (name, fn, grid, block, lds) in enumerate(kernels):
        k = Asm(); k.kidx = i; k.nlab = nl
        fn(k); nl = k.nlab + 1
        s += ".globl %s\n.p2align 8\n.type %s,@function\n%s:\n" % (name, name, name) + k.text()
        nv = (k.maxv + 7) // 8 * 8
        desc += (".p2align 6\n.amdhsa_kernel %s\n  .amdhsa_next_free_vgpr %d\n  .amdhsa_next_free_sgpr 102\n  .amdhsa_accum_offset %d\n"
                 "  .amdhsa_group_segment_fixed_size 0\n  .amdhsa_kernarg_size 80\n  .amdhsa_user_sgpr_count 2\n"
                 "  .amdhsa_user_sgpr_kernarg_segment_ptr 1\n  .amdhsa_system_sgpr_workgroup_id_x 1\n.end_amdhsa_kernel\n") % (name, nv, nv)
        print(name, "instrs", k.count, "vgprs", k.maxv, "sgprs", k.maxs, file=sys.stderr)
    s += ".section .rodata,\"a\"\n" + desc
    return s

if __name__ == "__main__":
    out = sys.argv[1]
    for a in sys.argv[2:]:
        kk, vv = a.split("="); setattr(OPT, kk, int(vv))
    open(out, "w").write(build(kernels()))
```
